```python
import torch

def _softmax(x, axis=-1):
    return torch.softmax(x, dim=axis)
def _gelu(x):
    return torch.nn.functional.gelu(x, approximate="tanh")
def _silu(x):
    return torch.nn.functional.silu(x)
def _sigmoid(x):
    return torch.sigmoid(x)
def _layernorm(x, axis=-1, eps=1e-5):
    m = x.mean(dim=axis, keepdim=True)
    v = x.var(dim=axis, keepdim=True, unbiased=False)
    return (x - m) / torch.sqrt(v + eps)
def _scatter_add(tgt, idx, src, axis=0):
    return tgt.clone().index_add_(axis, idx, src)
def _segment_sum(src, seg, n):
    out = torch.zeros((n,) + src.shape[1:], dtype=src.dtype)
    return out.index_add_(0, seg, src)
def _pad(x, pw):
    flat = tuple(v for pair in reversed(pw) for v in pair)
    return torch.nn.functional.pad(x, flat)

kernel_name = 'parallel_sum__sliding_block_cached__mixer_channel_mlp__decode'

def setup_inputs():

    _w = (lambda a: (lambda t: t.to(torch.bfloat16) if t.is_floating_point() else t)(torch.as_tensor(a)))
    def _A_setup():
        B, Sq, D = 1, 1, 448
        Hq, Hkv, Sk, Dh = 16, 8, 32768, 256
        assert Hq % Hkv == 0, (Hq, Hkv)
        return {
            "x": _w((lambda *s: torch.randn(*s, dtype=torch.bfloat16) * 0.05)(B, Sq, D)),
            "k_cache": _w((lambda *s: torch.randn(*s, dtype=torch.bfloat16) * 3.2)(B, Hkv, Sk, Dh)),
            "v_cache": _w((lambda *s: torch.randn(*s, dtype=torch.bfloat16) * 0.4)(B, Hkv, Sk, Dh)),
            "wq": _w((lambda *s: torch.randn(*s, dtype=torch.bfloat16) * 3.2)(D, Hq * Dh) * (D ** -0.5)),
            "wo": _w((lambda *s: torch.randn(*s, dtype=torch.bfloat16) * 0.4)(Hq * Dh, D) * ((Hq * Dh) ** -0.5)),
        }
    _A_in = _A_setup()

    def _B_setup():
        B, S, D, F = 1, 1, 448, 1792
        return {
            "x": _w((lambda *s: torch.randn(*s, dtype=torch.bfloat16) * 0.05)(B, S, D)),
            "w1": _w((lambda *s: torch.randn(*s, dtype=torch.bfloat16) * 3.2)(D, F) * (D ** -0.5)),
            "b1": _w((lambda *s: torch.randn(*s, dtype=torch.bfloat16) * 1.6)(F)),
            "w2": _w((lambda *s: torch.randn(*s, dtype=torch.bfloat16) * 0.1)(F, D) * (F ** -0.5)),
            "b2": _w((lambda *s: torch.randn(*s, dtype=torch.bfloat16) * 0.1)(D)),
        }
    _B_in = _B_setup()

    return {
        "A_x": _A_in["x"],
        "A_k_cache": _A_in["k_cache"],
        "A_v_cache": _A_in["v_cache"],
        "A_wq": _A_in["wq"],
        "A_wo": _A_in["wo"],
        "B_x": _B_in["x"],
        "B_w1": _B_in["w1"],
        "B_b1": _B_in["b1"],
        "B_w2": _B_in["w2"],
        "B_b2": _B_in["b2"],
    }

def reference(A_x, A_k_cache, A_v_cache, A_wq, A_wo, B_x, B_w1, B_b1, B_w2, B_b2):
    def _A_ref(x, k_cache, v_cache, wq, wo):
        B, Sq, D = x.shape
        Hq, Dh = 16, 256
        Hkv, Sk = k_cache.shape[1], k_cache.shape[2]
        W = min(4096, max(256, Sk // 4))
        rep = Hq // Hkv
        q = (lambda x, *d: x.permute(*d))((x @ wq).reshape(B, Sq, Hq, Dh), 0, 2, 1, 3)
        k = (lambda x, n, axis: torch.repeat_interleave(x, n, dim=axis))(k_cache[:, :, Sk - W:, :], rep, axis=1)
        v = (lambda x, n, axis: torch.repeat_interleave(x, n, dim=axis))(v_cache[:, :, Sk - W:, :], rep, axis=1)
        scores = torch.einsum("bhqd,bhkd->bhqk", q, k) * (Dh ** -0.5)
        p = _softmax(scores, axis=-1)
        o = torch.einsum("bhqk,bhkd->bhqd", p, v)
        return (lambda x, *d: x.permute(*d))(o, 0, 2, 1, 3).reshape(B, Sq, Hq * Dh) @ wo

    def _B_ref(x, w1, b1, w2, b2):
        y = _layernorm(x, axis=-1)
        h = _gelu(torch.einsum("bsd,df->bsf", y, w1) + b1)
        return torch.einsum("bsf,fd->bsd", h, w2) + b2

    x = A_x
    xn = _layernorm(x, axis=-1)
    return x + _A_ref(xn, A_k_cache, A_v_cache, A_wq, A_wo) + _B_ref(xn, B_w1, B_b1, B_w2, B_b2)
```

```python
import struct
import sys

NAME = "parallel_sum__sliding_block_cached__mixer_channel_mlp__decode"
DIAG = False
OPT = {}
for a in sys.argv[1:]:
    if a == "diag":
        DIAG = True
    elif "=" in a:
        k, v = a.split("=")
        OPT[k] = v

THR = int(OPT.get("thr", "4"))
NPRE = int(OPT.get("npre", "2"))
S2SLEEP = int(OPT.get("s2sleep", "1"))
FSLEEP = int(OPT.get("fsleep", "1"))
KFLAG = int(OPT.get("kflag", "0"))
PRER = OPT.get("prer", "1") == "1"
WSOFF = int(OPT.get("wsoff", "0")) << 20
OUTFILE = OPT.get("out", "cdna_kernels/%s.s" % NAME)

QB = 0x10000
HB = 0x20000
OB = 0x40000
OST = 4224
FAB = 0x200000
FBB = 0x280000
RST = 256 * 64 + 128
DIAGB = 0x1000000
WS_BYTES = 0x2000000

L_Q = 0x0000
L_XA = 0x0400
L_YB = 0x0800
L_FQ = 0x1000
L_FK = 0x1008
L_FW = 0x1040
L_FG = 0x1080
L_ST = 0x1100
L_GS = 0x1200
L_O = 0x2000
LDS_BYTES = 0x6000

POLL_MAX = 200000

out = []


def e(s):
    out.append("    " + s)


def lab(s):
    out.append(s + ":")


def c(s):
    out.append("    ; " + s)


def f32hex(x):
    return "%08x" % struct.unpack("<I", struct.pack("<f", x))[0]


sX, sK, sV, sWQ, sWO, sW1, sB1, sW2, sB2, sOUT, sWS = 16, 18, 20, 22, 24, 28, 30, 32, 34, 36, 40
S_EP = 42
S_W = 3
R0, R1, RWS, R3, R4, R5 = 44, 48, 52, 56, 60, 64
S_TA, S_TB = 68, 69
S_H, S_S = 70, 71
S_T0, S_T1, S_T2, S_T3 = 72, 73, 74, 75
S_C = 76
S_CNT = 77
S_M0, S_M1 = 78, 79
S_STAMP = 80
S_BW = 43
MASKS = [4, 6, 8, 10, 12, 14, 16, 18, 20, 22, 24, 26, 28, 30, 32, 34]
WSR = f"s[{RWS}:{RWS+3}]"


def srd(r, ptr, nbytes, off_sgpr=None):
    if off_sgpr is None:
        e(f"s_mov_b32 s{r}, s{ptr}")
        e(f"s_mov_b32 s{r+1}, s{ptr+1}")
    else:
        e(f"s_add_u32 s{r}, s{ptr}, s{off_sgpr}")
        e(f"s_addc_u32 s{r+1}, s{ptr+1}, 0")
    e(f"s_mov_b32 s{r+2}, {nbytes}")
    e(f"s_mov_b32 s{r+3}, 0x00020000")


def stamp(idx):
    if not DIAG:
        return
    e("s_memrealtime s[100:101]")
    e("s_waitcnt lgkmcnt(0)")
    e(f"s_mov_b32 s{S_STAMP+idx}, s100")


def dump_stamps(n, vtmp, vtmp2):
    if not DIAG:
        return
    e("s_mov_b64 exec, -1")
    e(f"s_lshl_b32 s{S_T0}, s2, 10")
    e(f"s_lshl_b32 s{S_T1}, s{S_W}, 6")
    e(f"s_add_u32 s{S_T0}, s{S_T0}, s{S_T1}")
    e(f"s_add_u32 s{S_T0}, s{S_T0}, {DIAGB}")
    e(f"v_mov_b32 v{vtmp}, s{S_T0}")
    for i in range(n):
        e(f"v_mov_b32 v{vtmp2}, s{S_STAMP+i}")
        e(f"buffer_store_dword v{vtmp2}, v{vtmp}, {WSR}, 0 offen offset:{4*i}")
        e("s_nop 1")


def tags():
    e(f"s_mul_i32 s{S_TA}, s{S_EP}, 1664525")
    e(f"s_add_u32 s{S_TA}, s{S_TA}, 1013904223")
    e(f"s_xor_b32 s{S_TB}, s{S_EP}, 0x5bd1e995")
    e(f"s_mul_i32 s{S_TB}, s{S_TB}, 0x9E3779B1")
    e(f"s_add_u32 s{S_TB}, s{S_TB}, 0x7F4A7C15")


DPPM = "row_mask:0xf bank_mask:0xf"


def dpp_red(op, regs, ctrl):
    for r in regs:
        e(f"{op}_dpp v{r}, v{r}, v{r} {ctrl} {DPPM}")
    if len(regs) < 3:
        e("s_nop %d" % (2 - len(regs)))


def swap_red(op, regs, tmps, which):
    for r, t in zip(regs, tmps):
        e(f"v_mov_b32 v{t}, v{r}")
    e("s_nop 1")
    for r, t in zip(regs, tmps):
        e(f"v_permlane{which}_swap_b32 v{r}, v{t}")
    for r, t in zip(regs, tmps):
        e(f"{op} v{r}, v{r}, v{t}")
    if len(regs) < 3:
        e("s_nop %d" % (2 - len(regs)))


def wave_red(op, regs, tmps):
    e("s_nop 1")
    dpp_red(op, regs, "quad_perm:[1,0,3,2]")
    dpp_red(op, regs, "quad_perm:[2,3,0,1]")
    dpp_red(op, regs, "row_half_mirror")
    dpp_red(op, regs, "row_mirror")
    swap_red(op, regs, tmps, 16)
    swap_red(op, regs, tmps, 32)


def bf16r(dst, src):
    e(f"v_cvt_pk_bf16_f32 v{dst}, v{src}, v{src}")
    e(f"v_lshlrev_b32 v{dst}, 16, v{dst}")


def layernorm(f, t, vvalid):
    a, b, d, g = t[0], t[1], t[2], t[3]
    e(f"v_add_f32 v{a}, v{f[0]}, v{f[1]}")
    e(f"v_add_f32 v{b}, v{f[2]}, v{f[3]}")
    e(f"v_add_f32 v{d}, v{f[4]}, v{f[5]}")
    e(f"v_add_f32 v{g}, v{f[6]}, v{f[7]}")
    e(f"v_add_f32 v{a}, v{a}, v{b}")
    e(f"v_add_f32 v{d}, v{d}, v{g}")
    e(f"v_add_f32 v{a}, v{a}, v{d}")
    wave_red("v_add_f32", [a], [b])
    e(f"v_mul_f32 v{a}, 0x{f32hex(1.0/448.0)}, v{a}")
    e(f"v_mov_b32 v{d}, 0")
    for i in range(8):
        e(f"v_sub_f32 v{b}, v{f[i]}, v{a}")
        e(f"v_fmac_f32 v{d}, v{b}, v{b}")
    e(f"v_mul_f32 v{d}, v{d}, v{vvalid}")
    wave_red("v_add_f32", [d], [b])
    e(f"v_mul_f32 v{d}, 0x{f32hex(1.0/448.0)}, v{d}")
    bf16r(a, a)
    bf16r(d, d)
    e(f"v_add_f32 v{d}, 0x{f32hex(1e-5)}, v{d}")
    bf16r(d, d)
    e(f"v_sqrt_f32 v{d}, v{d}")
    e("s_nop 0")
    bf16r(d, d)
    e(f"v_rcp_f32 v{d}, v{d}")
    e("s_nop 0")
    for i in range(8):
        e(f"v_sub_f32 v{f[i]}, v{f[i]}, v{a}")
        bf16r(f[i], f[i])
        e(f"v_mul_f32 v{f[i]}, v{f[i]}, v{d}")
        bf16r(f[i], f[i])
        e(f"v_mul_f32 v{f[i]}, v{f[i]}, v{vvalid}")


def ipoll(label, loads, sleep=0):
    assert len(loads) <= len(MASKS)
    e(f"s_mov_b32 s{S_CNT}, 0")
    for (pre, ld, va, vb) in loads:
        if pre:
            e(pre)
        e(ld)
    e(f"s_branch {label}_chk")
    lab(label)
    for i, (pre, ld, va, vb) in enumerate(loads):
        m = MASKS[i]
        e(f"s_cmp_eq_u64 s[{m}:{m+1}], 0")
        e(f"s_cbranch_scc1 {label}_s{i}")
        e(f"s_mov_b64 exec, s[{m}:{m+1}]")
        if pre:
            e(pre)
        e(ld)
        lab(f"{label}_s{i}")
    e("s_mov_b64 exec, -1")
    lab(f"{label}_chk")
    e("s_waitcnt vmcnt(0)")
    for i, (pre, ld, va, vb) in enumerate(loads):
        m = MASKS[i]
        e(f"v_cmp_ne_u32 s[{m}:{m+1}], s{S_TA}, v{va}")
        e(f"v_cmp_ne_u32 vcc, s{S_TB}, v{vb}")
        e(f"s_or_b64 s[{m}:{m+1}], s[{m}:{m+1}], vcc")
        if i == 0:
            e(f"s_mov_b64 s[{S_M0}:{S_M1}], s[{m}:{m+1}]")
        else:
            e(f"s_or_b64 s[{S_M0}:{S_M1}], s[{S_M0}:{S_M1}], s[{m}:{m+1}]")
    e(f"s_cmp_eq_u64 s[{S_M0}:{S_M1}], 0")
    e(f"s_cbranch_scc1 {label}_done")
    if sleep:
        e(f"s_sleep {sleep}")
    e(f"s_add_u32 s{S_CNT}, s{S_CNT}, 1")
    e(f"s_cmp_lt_u32 s{S_CNT}, {POLL_MAX}")
    e(f"s_cbranch_scc1 {label}")
    lab(label + "_done")


def lds_spin(label, vaddr, off, vt, sleep=1):
    e(f"s_mov_b32 s{S_CNT}, 0")
    lab(label)
    e(f"ds_read_b64 v[{vt}:{vt+1}], v{vaddr} offset:{off}")
    e("s_waitcnt lgkmcnt(0)")
    e(f"v_cmp_eq_u32 vcc, s{S_TA}, v{vt}")
    e(f"v_cmp_eq_u32 s[{S_M0}:{S_M1}], s{S_TB}, v{vt+1}")
    e(f"s_and_b64 vcc, vcc, s[{S_M0}:{S_M1}]")
    e("s_cmp_eq_u64 vcc, -1")
    e(f"s_cbranch_scc1 {label}_done")
    if sleep:
        e(f"s_sleep {sleep}")
    e(f"s_add_u32 s{S_CNT}, s{S_CNT}, 1")
    e(f"s_cmp_lt_u32 s{S_CNT}, {POLL_MAX*10}")
    e(f"s_cbranch_scc1 {label}")
    lab(label + "_done")


def sel_masks(vm, vlane, t0, t1, rows8):
    e(f"v_and_b32 v{t0}, 1, v{vlane}")
    e(f"v_lshlrev_b32 v{t0}, 4, v{t0}")
    e(f"v_mov_b32 v{t1}, 0xffff")
    e(f"v_lshlrev_b32 v{t1}, v{t0}, v{t1}")
    if rows8:
        e(f"v_bfe_u32 v{t0}, v{vlane}, 1, 3")
    else:
        e(f"v_bfe_u32 v{t0}, v{vlane}, 1, 2")
    for r in range(4):
        e(f"v_cmp_eq_u32 vcc, {r}, v{t0}")
        e("s_nop 1")
        e(f"v_cndmask_b32 v{vm[r]}, 0, v{t1}, vcc")


def pub_addr(base, va, vt):
    e(f"v_bfe_u32 v{va}, v1, 1, 3")
    e(f"v_lshrrev_b32 v{vt}, 5, v1")
    e(f"v_lshl_add_u32 v{va}, v{vt}, 3, v{va}")
    e(f"v_mul_u32_u24 v{va}, {RST}, v{va}")
    e(f"v_and_b32 v{vt}, 1, v1")
    e(f"v_lshl_add_u32 v{va}, v{vt}, 5, v{va}")
    e(f"v_bfe_u32 v{vt}, v1, 4, 1")
    e(f"v_lshl_add_u32 v{va}, v{vt}, 4, v{va}")
    e(f"s_lshl_b32 s{S_T0}, s2, 6")
    e(f"s_add_u32 s{S_T0}, s{S_T0}, {base}")
    e(f"v_add_u32 v{va}, s{S_T0}, v{va}")


def publish_D(Dr, va, tb):
    for p in range(2):
        d0, d1 = Dr[2 * p], Dr[2 * p + 1]
        e(f"v_cvt_pk_bf16_f32 v{tb+4*p}, v{d0}, v{d0+1}")
        e(f"v_cvt_pk_bf16_f32 v{tb+4*p+2}, v{d0+2}, v{d0+3}")
        e(f"v_cvt_pk_bf16_f32 v{d1}, v{d1}, v{d1+1}")
        e(f"v_cvt_pk_bf16_f32 v{d1+2}, v{d1+2}, v{d1+3}")
        e(f"v_mov_b32 v{tb+4*p+1}, s{S_TA}")
        e(f"v_mov_b32 v{tb+4*p+3}, s{S_TB}")
    e(f"s_mov_b32 s{S_T2}, {16*RST}")
    for p in range(2):
        d1 = Dr[2 * p + 1]
        e(f"v_permlane32_swap_b32 v{tb+4*p}, v{d1}")
        e(f"v_permlane32_swap_b32 v{tb+4*p+2}, v{d1+2}")
    e(f"buffer_store_dwordx4 v[{tb}:{tb+3}], v{va}, {WSR}, 0 offen sc1")
    e("s_mov_b32 exec_hi, 0x00ff00ff")
    e(f"buffer_store_dwordx4 v[{tb+4}:{tb+7}], v{va}, {WSR}, s{S_T2} offen sc1")
    e("s_mov_b64 exec, -1")


LOG2E = 1.4426950408889634

hdr = open("cdna_kernels/%s.s.ref" % NAME).read().split("\n")
for line in hdr:
    if line.startswith("; @launch"):
        break
    out.append(line)
out.append(f"; @launch grid=(256,1,1) block=(640,1,1) lds={LDS_BYTES}")
out.append('.amdgcn_target "amdgcn-amd-amdhsa--gfx950"')
out.append(".text")
out.append(f".globl {NAME}_kernel")
out.append(".p2align 8")
out.append(f".type {NAME}_kernel,@function")
lab(f"{NAME}_kernel")
e("s_cmp_ge_u32 s2, 256")
e("s_cbranch_scc1 L_end")
stamp(0)
e("s_load_dwordx16 s[16:31], s[0:1], 0")
e("s_load_dwordx8 s[32:39], s[0:1], 64")
e("s_load_dwordx2 s[40:41], s[0:1], 96")
e("v_lshrrev_b32 v1, 6, v0")
e("v_and_b32 v2, 63, v0")
e("s_nop 0")
e(f"v_readfirstlane_b32 s{S_W}, v1")
e("v_mov_b32 v1, v2")
e("v_lshlrev_b32 v2, 2, v2")
e("v_mov_b32 v3, 0")
e(f"ds_write_b32 v2, v3 offset:{L_FQ}")
e(f"s_and_b32 s{S_H}, s2, 7")
e(f"s_lshr_b32 s{S_S}, s2, 3")
e(f"s_mov_b32 s{S_C}, 0x{f32hex(0.0625*LOG2E)}")
e("s_waitcnt lgkmcnt(0)")
if WSOFF:
    e(f"s_add_u32 s{sWS}, s{sWS}, {WSOFF}")
    e(f"s_addc_u32 s{sWS+1}, s{sWS+1}, 0")
e(f"s_load_dword s{S_EP}, s[{sWS}:{sWS+1}], 0")
srd(RWS, sWS, WS_BYTES)
e(f"s_cmp_eq_u32 s{S_W}, 0")
e("s_cbranch_scc1 L_ctrlA")
e(f"s_cmp_eq_u32 s{S_W}, 1")
e("s_cbranch_scc1 L_ctrlB")

c("================= bulk wave =================")
e(f"s_sub_u32 s{S_BW}, s{S_W}, 2")
e(f"s_lshl_b32 s{S_T0}, s{S_H}, 24")
e(f"s_lshl_b32 s{S_T1}, s{S_S}, 16")
e(f"s_add_u32 s{S_T0}, s{S_T0}, s{S_T1}")
e(f"s_add_u32 s{S_T0}, s{S_T0}, {28672*512}")
srd(R0, sK, 65536, S_T0)
srd(R1, sV, 65536, S_T0)
e(f"s_mov_b32 s{S_T3}, 4096")
vI, vG, vKo, vVo = 2, 3, 4, 5
e(f"v_and_b32 v{vI}, 15, v1")
e(f"v_lshrrev_b32 v{vG}, 4, v1")
e(f"s_lshl_b32 s{S_T1}, s{S_BW}, 13")
e(f"v_lshlrev_b32 v{vKo}, 9, v{vI}")
e(f"v_lshl_add_u32 v{vKo}, v{vG}, 4, v{vKo}")
e(f"v_add_u32 v{vKo}, s{S_T1}, v{vKo}")
e(f"v_lshlrev_b32 v{vVo}, 9, v{vG}")
e(f"v_lshl_add_u32 v{vVo}, v{vI}, 4, v{vVo}")
e(f"v_add_u32 v{vVo}, s{S_T1}, v{vVo}")
KR, VR, QR = 32, 64, 96
for kk in range(8):
    if kk == NPRE:
        e("s_barrier")
    e(f"buffer_load_dwordx4 v[{KR+4*kk}:{KR+4*kk+3}], v{vKo}, s[{R0}:{R0+3}], 0 offen offset:{kk*64} nt")
    if kk + 1 >= THR:
        e(f"s_waitcnt vmcnt({THR-1})")
for t in range(4):
    for half in range(2):
        so = "0" if t < 2 else f"s{S_T3}"
        idx = 2 * t + half
        e(f"buffer_load_dwordx4 v[{VR+4*idx}:{VR+4*idx+3}], v{vVo}, s[{R1}:{R1+3}], {so} offen offset:{(t&1)*2048+half*256} nt")
        if idx < 7:
            e(f"s_waitcnt vmcnt({THR-1})")
        if idx == THR - 1:
            e("s_waitcnt lgkmcnt(0)")
            tags()
            e(f"s_cmp_lg_u32 s{S_BW}, {KFLAG}")
            e("s_cbranch_scc1 L_b_nok")
            e(f"v_mov_b32 v6, s{S_TA}")
            e(f"v_mov_b32 v7, s{S_TB}")
            e("v_mov_b32 v8, 0")
            e(f"ds_write_b64 v8, v[6:7] offset:{L_FK}")
            lab("L_b_nok")
stamp(1)
vM = [6, 7, 8, 9]
sel_masks(vM, 1, 10, 11, False)
vQa, vZ = 10, 11
e(f"v_lshrrev_b32 v{vQa}, 3, v{vI}")
e(f"v_lshlrev_b32 v{vQa}, 9, v{vQa}")
e(f"v_lshl_add_u32 v{vQa}, v{vG}, 4, v{vQa}")
e(f"v_mov_b32 v{vZ}, 0")
lds_spin("L_b_q", vZ, L_FQ, 12)
stamp(2)
for kk in range(8):
    e(f"ds_read_b128 v[{QR+4*kk}:{QR+4*kk+3}], v{vQa} offset:{L_Q+kk*64}")
e("s_waitcnt vmcnt(8) lgkmcnt(0)")
stamp(3)
D = 12
for kk in range(8):
    cc = "0" if kk == 0 else f"v[{D}:{D+3}]"
    e(f"v_mfma_f32_16x16x32_bf16 v[{D}:{D+3}], v[{KR+4*kk}:{KR+4*kk+3}], v[{QR+4*kk}:{QR+4*kk+3}], {cc}")
e("s_nop 7")
P = [16, 17, 18, 19]
e(f"v_cvt_pk_bf16_f32 v20, v{D}, v{D+1}")
e(f"v_cvt_pk_bf16_f32 v21, v{D+2}, v{D+3}")
e(f"v_lshlrev_b32 v{P[0]}, 16, v20")
e(f"v_and_b32 v{P[1]}, 0xffff0000, v20")
e(f"v_lshlrev_b32 v{P[2]}, 16, v21")
e(f"v_and_b32 v{P[3]}, 0xffff0000, v21")
vMx, vL = 22, 23
e(f"v_max_f32 v{vMx}, v{P[0]}, v{P[1]}")
e(f"v_max3_f32 v{vMx}, v{P[2]}, v{P[3]}, v{vMx}")
swap_red("v_max_f32", [vMx], [20], 16)
swap_red("v_max_f32", [vMx], [20], 32)
for r in range(4):
    e(f"v_sub_f32 v{P[r]}, v{P[r]}, v{vMx}")
for r in range(4):
    e(f"v_mul_f32 v{P[r]}, s{S_C}, v{P[r]}")
for r in range(4):
    e(f"v_exp_f32 v{P[r]}, v{P[r]}")
e("s_nop 0")
e(f"v_add_f32 v{vL}, v{P[0]}, v{P[1]}")
e(f"v_add_f32 v20, v{P[2]}, v{P[3]}")
e(f"v_add_f32 v{vL}, v{vL}, v20")
for r in range(4):
    e(f"v_cvt_pk_bf16_f32 v{P[r]}, v{P[r]}, v{P[r]}")
swap_red("v_add_f32", [vL], [20], 16)
swap_red("v_add_f32", [vL], [20], 32)
e(f"v_permlane32_swap_b32 v{P[0]}, v{P[2]}")
e(f"v_permlane32_swap_b32 v{P[1]}, v{P[3]}")
e("s_nop 1")
e(f"v_permlane16_swap_b32 v{P[0]}, v{P[1]}")
e(f"v_permlane16_swap_b32 v{P[2]}, v{P[3]}")
AR = 96
for t in range(4):
    for r in range(4):
        e(f"v_and_b32 v{AR+4*t+r}, v{P[t]}, v{vM[r]}")
e(f"v_lshrrev_b32 v20, 3, v{vI}")
e(f"v_lshlrev_b32 v20, 3, v20")
e(f"s_lshl_b32 s{S_T1}, s{S_BW}, 4")
e(f"v_add_u32 v20, s{S_T1}, v20")
e(f"ds_write_b64 v20, v[{vMx}:{vL}] offset:{L_ST}")
e(f"v_lshrrev_b32 v20, 5, v1")
e(f"v_lshlrev_b32 v20, 10, v20")
e(f"v_lshl_add_u32 v20, v{vI}, 5, v20")
e(f"v_and_b32 v21, 1, v{vG}")
e(f"v_lshl_add_u32 v20, v21, 4, v20")
e(f"s_lshl_b32 s{S_T1}, s{S_BW}, 11")
e(f"v_add_u32 v20, s{S_T1}, v20")
e(f"v_mov_b32 v24, s{S_TA}")
e(f"v_mov_b32 v25, s{S_TB}")
e(f"s_lshl_b32 s{S_T1}, s{S_BW}, 3")
e(f"v_mov_b32 v21, s{S_T1}")
e(f"v_and_b32 v26, 7, v1")
e(f"v_lshlrev_b32 v26, 3, v26")
e(f"s_lshr_b32 s{S_T1}, s{S_BW}, 1")
e(f"s_lshl_b32 s{S_T1}, s{S_T1}, 3")
e(f"v_mov_b32 v27, s{S_T1}")
e(f"v_lshrrev_b32 v28, 3, v1")
e(f"v_and_b32 v29, 3, v1")
e(f"v_lshlrev_b32 v30, 6, v28")
e(f"v_lshl_add_u32 v30, v29, 4, v30")
e(f"s_lshl_b32 s{S_T1}, s{S_BW}, 9")
e(f"v_add_u32 v30, s{S_T1}, v30")
e(f"s_lshl_b32 s{S_T0}, s{S_H}, 5")
e(f"s_lshl_b32 s{S_T1}, s{S_BW}, 3")
e(f"s_add_u32 s{S_T0}, s{S_T0}, s{S_T1}")
e(f"s_mul_i32 s{S_T0}, s{S_T0}, {OST}")
e(f"s_lshl_b32 s{S_T1}, s{S_S}, 7")
e(f"s_add_u32 s{S_T0}, s{S_T0}, s{S_T1}")
e(f"s_add_u32 s{S_T0}, s{S_T0}, {OB}")
e(f"v_mul_u32_u24 v28, {OST}, v28")
e(f"v_and_b32 v29, 7, v1")
e(f"v_lshl_add_u32 v28, v29, 4, v28")
e(f"v_add_u32 v28, s{S_T0}, v28")
stamp(4)
DL, DH = 112, 116
for t in range(4):
    for half in range(2):
        idx = 2 * t + half
        e(f"s_waitcnt vmcnt({7-idx})")
        dd = DL if half == 0 else DH
        cc = "0" if t == 0 else f"v[{dd}:{dd+3}]"
        e(f"v_mfma_f32_16x16x32_bf16 v[{dd}:{dd+3}], v[{AR+4*t}:{AR+4*t+3}], v[{VR+4*idx}:{VR+4*idx+3}], {cc}")
stamp(5)
e("s_nop 6")
e(f"ds_write_b128 v20, v[{DL}:{DL+3}] offset:{L_O}")
e("s_nop 0")
e(f"ds_write_b128 v20, v[{DH}:{DH+3}] offset:{L_O+512}")
e(f"ds_write_b64 v21, v[24:25] offset:{L_FW}")
e(f"s_cmp_ge_u32 s{S_BW}, 4")
e("s_cbranch_scc1 L_b_gather")
lds_spin("L_b_w", 26, L_FW, 22, sleep=0)
stamp(6)
ST, OV = 32, 48
for w in range(8):
    e(f"ds_read_b64 v[{ST+2*w}:{ST+2*w+1}], v27 offset:{L_ST+16*w}")
for w in range(8):
    e(f"ds_read_b128 v[{OV+4*w}:{OV+4*w+3}], v30 offset:{L_O+2048*w}")
e("s_waitcnt lgkmcnt(8)")
e(f"v_max3_f32 v12, v{ST}, v{ST+2}, v{ST+4}")
e(f"v_max3_f32 v12, v{ST+6}, v{ST+8}, v12")
e(f"v_max3_f32 v12, v{ST+10}, v{ST+12}, v12")
e(f"v_max_f32 v12, v{ST+14}, v12")
for w in range(8):
    e(f"v_sub_f32 v{ST+2*w}, v{ST+2*w}, v12")
for w in range(8):
    e(f"v_mul_f32 v{ST+2*w}, s{S_C}, v{ST+2*w}")
for w in range(8):
    e(f"v_exp_f32 v{ST+2*w}, v{ST+2*w}")
e("v_cmp_lt_u32 vcc, 3, v29")
e(f"v_mul_f32 v13, v{ST}, v{ST+1}")
for w in range(1, 8):
    e(f"v_fmac_f32 v13, v{ST+2*w}, v{ST+2*w+1}")
e("s_waitcnt lgkmcnt(0)")
for j in range(4):
    e(f"v_mul_f32 v{16+j}, v{ST}, v{OV+j}")
for w in range(1, 8):
    for j in range(4):
        e(f"v_fmac_f32 v{16+j}, v{ST+2*w}, v{OV+4*w+j}")
e("v_cvt_pk_bf16_f32 v16, v16, v17")
e("v_cvt_pk_bf16_f32 v18, v18, v19")
e("v_mov_b32 v17, v24")
e("v_mov_b32 v19, v25")
e("v_cndmask_b32 v16, v16, v12, vcc")
e("v_cndmask_b32 v18, v18, v13, vcc")
e(f"buffer_store_dwordx4 v[16:19], v28, {WSR}, 0 offen sc1")
stamp(7)
lab("L_b_gather")
e("s_cmp_ge_u32 s2, 28")
e("s_cbranch_scc1 L_b_end")
e(f"s_mul_i32 s{S_T0}, s2, {RST}")
e(f"s_and_b32 s{S_T1}, s{S_BW}, 3")
e(f"s_lshl_b32 s{S_T1}, s{S_T1}, 12")
e(f"s_add_u32 s{S_T0}, s{S_T0}, s{S_T1}")
e(f"s_lshr_b32 s{S_T1}, s{S_BW}, 2")
e(f"s_mul_i32 s{S_T1}, s{S_T1}, {FBB-FAB}")
e(f"s_add_u32 s{S_T0}, s{S_T0}, s{S_T1}")
e(f"s_add_u32 s{S_T0}, s{S_T0}, {FAB}")
e(f"v_lshl_add_u32 v20, v1, 4, s{S_T0}")
GN = 32
gl = [(None, f"buffer_load_dwordx4 v[{GN+4*n}:{GN+4*n+3}], v20, {WSR}, 0 offen offset:{n*1024} sc1", GN + 4 * n + 1, GN + 4 * n + 3) for n in range(4)]
e(f"s_cmp_eq_u32 s{S_BW}, 7")
e("s_cbranch_scc1 L_b_g7")
ipoll("L_b_g", gl, sleep=FSLEEP)
e("s_branch L_b_gsum")
lab("L_b_g7")
ipoll("L_b_g2", gl[:2], sleep=FSLEEP)
for r in range(GN + 8, GN + 16):
    e(f"v_mov_b32 v{r}, 0")
lab("L_b_gsum")
for n in range(4):
    e(f"v_lshlrev_b32 v{GN+4*n+1}, 16, v{GN+4*n}")
    e(f"v_lshlrev_b32 v{GN+4*n+3}, 16, v{GN+4*n+2}")
    e(f"v_and_b32 v{GN+4*n}, 0xffff0000, v{GN+4*n}")
    e(f"v_and_b32 v{GN+4*n+2}, 0xffff0000, v{GN+4*n+2}")
src = [1, 0, 3, 2]
for j in range(4):
    e(f"v_add_f32 v{12+j}, v{GN+src[j]}, v{GN+4+src[j]}")
    e(f"v_add_f32 v{16+j}, v{GN+8+src[j]}, v{GN+12+src[j]}")
for j in range(4):
    e(f"v_add_f32 v{12+j}, v{12+j}, v{16+j}")
G4 = [12, 13, 14, 15]
e("s_nop 0")
dpp_red("v_add_f32", G4, "row_ror:4")
dpp_red("v_add_f32", G4, "row_ror:8")
swap_red("v_add_f32", G4, [16, 17, 18, 19], 16)
swap_red("v_add_f32", G4, [16, 17, 18, 19], 32)
e(f"v_and_b32 v20, 3, v1")
e(f"s_lshl_b32 s{S_T1}, s{S_BW}, 6")
e(f"v_lshl_add_u32 v20, v20, 4, s{S_T1}")
e(f"ds_write_b128 v20, v[12:15] offset:{L_GS}")
e(f"ds_write_b64 v21, v[24:25] offset:{L_FG}")
lab("L_b_end")
stamp(8)
dump_stamps(9, 2, 3)
e("s_endpgm")

lab("L_ctrlA")
c("================= control A =================")
e("s_setprio 3")
srd(R0, sX, 896)
srd(R1, sWQ, 448 * 8192)
srd(R3, sWO, 4096 * 896)
srd(R4, sOUT, 896)
srd(R5, sB2, 896)
e("v_lshlrev_b32 v2, 4, v1")
e(f"buffer_load_dwordx4 v[4:7], v2, s[{R0}:{R0+3}], 0 offen")
e("v_lshrrev_b32 v3, 2, v1")
e("v_lshlrev_b32 v8, 14, v3")
e("v_and_b32 v9, 3, v1")
e("v_lshl_add_u32 v8, v9, 4, v8")
e(f"s_lshl_b32 s{S_T0}, s{S_H}, 10")
e(f"s_lshr_b32 s{S_T1}, s{S_S}, 1")
e(f"s_lshl_b32 s{S_T1}, s{S_T1}, 6")
e(f"s_add_u32 s{S_T0}, s{S_T0}, s{S_T1}")
e(f"s_and_b32 s{S_T1}, s{S_S}, 1")
e(f"s_mul_i32 s{S_T1}, s{S_T1}, {224*8192}")
e(f"s_add_u32 s{S_T0}, s{S_T0}, s{S_T1}")
e(f"v_add_u32 v8, s{S_T0}, v8")
WQ = 32
for p in range(7):
    for u in range(2):
        idx = 2 * p + u
        st = S_T2 + (idx & 1)
        e(f"s_mov_b32 s{st}, {p*32*8192 + u*8192}")
        e(f"buffer_load_dwordx4 v[{WQ+4*idx}:{WQ+4*idx+3}], v8, s[{R1}:{R1+3}], s{st} offen nt")
e("v_and_b32 v31, 3, v1")
e("v_lshlrev_b32 v31, 6, v31")
e("v_lshrrev_b32 v30, 5, v1")
e("v_lshl_add_u32 v31, v30, 5, v31")
e("v_bfe_u32 v30, v1, 4, 1")
e("v_lshl_add_u32 v31, v30, 4, v31")
e(f"s_lshl_b32 s{S_T0}, s{S_H}, 13")
e(f"s_and_b32 s{S_T1}, s{S_S}, 1")
e(f"s_lshl_b32 s{S_T1}, s{S_T1}, 12")
e(f"s_add_u32 s{S_T0}, s{S_T0}, s{S_T1}")
e(f"s_lshr_b32 s{S_T1}, s{S_S}, 1")
e(f"s_lshl_b32 s{S_T1}, s{S_T1}, 8")
e(f"s_add_u32 s{S_T0}, s{S_T0}, s{S_T1}")
e(f"s_add_u32 s{S_T0}, s{S_T0}, {QB}")
e(f"v_add_u32 v31, s{S_T0}, v31")
NX = 0
if PRER:
    e(f"buffer_load_dwordx4 v[100:103], v31, {WSR}, 0 offen sc1")
    NX = 1
e("s_barrier")
e("v_cmp_gt_u32 vcc, 56, v1")
e("s_nop 1")
e("v_cndmask_b32 v9, 0, 1.0, vcc")
e(f"s_waitcnt vmcnt({14+NX})")
stamp(1)
F = list(range(10, 18))
for k in range(4):
    e(f"v_lshlrev_b32 v{F[2*k]}, 16, v{4+k}")
    e(f"v_and_b32 v{F[2*k+1]}, 0xffff0000, v{4+k}")
layernorm(F, [18, 19, 20, 21], 9)
for k in range(4):
    e(f"v_cvt_pk_bf16_f32 v{4+k}, v{F[2*k]}, v{F[2*k+1]}")
e(f"ds_write_b128 v2, v[4:7] offset:{L_XA}")
e(f"s_and_b32 s{S_T1}, s{S_S}, 1")
e(f"s_mul_i32 s{S_T1}, s{S_T1}, 448")
e(f"v_lshl_add_u32 v3, v3, 2, s{S_T1}")
XP = 88
for p in range(7):
    e(f"ds_read_b32 v{XP+p}, v3 offset:{L_XA+64*p}")
e(f"s_mov_b32 s{S_T2}, 0x05040100")
e(f"s_mov_b32 s{S_T3}, 0x07060302")
AC = 96
for k in range(8):
    e(f"v_mov_b32 v{AC+k+8}, 0")
AC = 104
e("s_waitcnt lgkmcnt(0)")
tags()
stamp(2)
for p in range(7):
    e(f"s_waitcnt vmcnt({12-2*p+NX})")
    a, b = WQ + 8 * p, WQ + 8 * p + 4
    for k in range(4):
        e(f"v_perm_b32 v{112+2*k}, v{b+k}, v{a+k}, s{S_T2}")
        e(f"v_perm_b32 v{113+2*k}, v{b+k}, v{a+k}, s{S_T3}")
    for k in range(8):
        e(f"v_dot2_f32_bf16 v{AC+k}, v{112+k}, v{XP+p}, v{AC+k}")
    e("s_nop 2")
stamp(3)
e("s_nop 2")
for k in range(4):
    e(f"v_permlane32_swap_b32 v{AC+k}, v{AC+k+4}")
for k in range(4):
    e(f"v_add_f32 v{AC+k}, v{AC+k}, v{AC+k+4}")
e("s_nop 1")
for k in range(2):
    e(f"v_permlane16_swap_b32 v{AC+k}, v{AC+k+2}")
for k in range(2):
    e(f"v_add_f32 v{AC+k}, v{AC+k}, v{AC+k+2}")
e("s_nop 1")
dpp_red("v_add_f32", [AC, AC + 1], "row_ror:8")
dpp_red("v_add_f32", [AC, AC + 1], "row_ror:4")
e(f"v_mov_b32 v112, v{AC}")
e(f"v_mov_b32 v113, s{S_TA}")
e(f"v_mov_b32 v114, v{AC+1}")
e(f"v_mov_b32 v115, s{S_TB}")
e("s_mov_b32 exec_lo, 0x000f000f")
e("s_mov_b32 exec_hi, 0x000f000f")
e(f"buffer_store_dwordx4 v[112:115], v31, {WSR}, 0 offen sc1")
e("s_mov_b64 exec, -1")
stamp(4)
e(f"s_lshl_b32 s{S_T0}, s{S_H}, 5")
e(f"s_add_u32 s{S_T0}, s{S_T0}, s{S_S}")
e(f"s_mul_i32 s{S_T0}, s{S_T0}, {OST}")
e(f"s_add_u32 s{S_T0}, s{S_T0}, {OB}")
e(f"v_add_u32 v18, s{S_T0}, v2")
if PRER:
    for n in range(4):
        e(f"buffer_load_dwordx4 v[{32+4*n}:{35+4*n}], v18, {WSR}, 0 offen offset:{n*1024} sc1")
    e(f"s_mul_i32 s{S_T0}, s2, 1808")
    e(f"s_add_u32 s{S_T0}, s{S_T0}, {FAB}")
    e(f"v_add_u32 v19, s{S_T0}, v2")
    e(f"buffer_load_dwordx4 v[48:51], v19, {WSR}, 0 offen sc1")
    e(f"buffer_load_dwordx4 v[52:55], v19, {WSR}, 0 offen offset:1024 sc1")
e("v_mov_b32 v22, 0")
lds_spin("L_a_k", 22, L_FK, 20, sleep=2)
stamp(6)
e(f"s_lshl_b32 s{S_T0}, s{S_H}, 13")
e(f"s_add_u32 s{S_T0}, s{S_T0}, {QB}")
e(f"v_add_u32 v19, s{S_T0}, v2")
e(f"s_mov_b32 s{S_T2}, 4096")
QG = 96
ipoll("L_a_q",
      [(None, f"buffer_load_dwordx4 v[{QG+4*n}:{QG+4*n+3}], v19, {WSR}, 0 offen offset:{n*1024} sc1", QG + 4 * n + 1, QG + 4 * n + 3) for n in range(4)] +
      [(None, f"buffer_load_dwordx4 v[{QG+16+4*n}:{QG+16+4*n+3}], v19, {WSR}, s{S_T2} offen offset:{n*1024} sc1", QG + 16 + 4 * n + 1, QG + 16 + 4 * n + 3) for n in range(4)])
for n in range(4):
    e(f"v_add_f32 v{QG+4*n}, v{QG+4*n}, v{QG+16+4*n}")
    e(f"v_add_f32 v{QG+4*n+2}, v{QG+4*n+2}, v{QG+16+4*n+2}")
for n in range(4):
    e(f"v_cvt_pk_bf16_f32 v{QG+4*n}, v{QG+4*n}, v{QG+4*n+2}")
e("v_lshlrev_b32 v19, 2, v1")
e(f"v_mov_b32 v20, s{S_TA}")
e(f"v_mov_b32 v21, s{S_TB}")
e("v_mov_b32 v22, 0")
for n in range(4):
    e(f"ds_write_b32 v19, v{QG+4*n} offset:{L_Q+256*n}")
e(f"ds_write_b64 v22, v[20:21] offset:{L_FQ}")
stamp(5)
e("v_and_b32 v23, 15, v1")
e("v_lshrrev_b32 v24, 4, v1")
e(f"s_movk_i32 s{S_T2}, 896")
e(f"v_mul_lo_u32 v25, v24, s{S_T2}")
e("v_lshl_add_u32 v25, v23, 4, v25")
e(f"s_lshl_b32 s{S_T0}, s{S_H}, 5")
e(f"s_add_u32 s{S_T0}, s{S_T0}, s{S_S}")
e(f"s_mul_i32 s{S_T0}, s{S_T0}, {16*896}")
e(f"v_add_u32 v25, s{S_T0}, v25")
WO = 32
for t in range(4):
    st = S_T2 + (t & 1)
    e(f"s_mov_b32 s{st}, {t*4*896}")
    for blk in range(4):
        idx = 4 * t + blk
        e(f"buffer_load_dwordx4 v[{WO+4*idx}:{WO+4*idx+3}], v25, s[{R3}:{R3+3}], s{st} offen offset:{blk*256} nt")
e(f"s_lshl_b32 s{S_T0}, s2, 5")
e("v_and_b32 v26, 7, v1")
e(f"v_lshl_add_u32 v26, v26, 2, s{S_T0}")
e(f"buffer_load_dword v27, v26, s[{R0}:{R0+3}], 0 offen")
e(f"buffer_load_dword v28, v26, s[{R5}:{R5+3}], 0 offen")
vM = [10, 11, 12, 13]
sel_masks(vM, 1, 14, 15, True)
e("v_lshrrev_b32 v30, 1, v24")
e("v_cmp_eq_u32 vcc, 1, v30")
for t in range(4):
    e(f"v_mov_b32 v{14+t}, {4*t}")
    e(f"v_mov_b32 v31, {4*(7-t)}")
    e(f"v_cndmask_b32 v{14+t}, v{14+t}, v31, vcc")
e("v_and_b32 v29, 1, v24")
e("v_cmp_eq_u32 vcc, 1, v29")
e("v_mov_b32 v29, 0x01000100")
e("v_mov_b32 v31, 0x03020302")
e("v_cndmask_b32 v29, v29, v31, vcc")
pub_addr(FAB, 30, 31)
e("v_and_b32 v20, 7, v1")
e("v_lshlrev_b32 v20, 3, v20")
e("s_waitcnt vmcnt(0)")
lds_spin("L_a_w", 20, L_FW, 22, sleep=2)
VN = 96
ipoll("L_a_o",
      [(None, f"buffer_load_dwordx4 v[{VN+4*n}:{VN+4*n+3}], v18, {WSR}, 0 offen offset:{n*1024} sc1", VN + 4 * n + 1, VN + 4 * n + 3) for n in range(4)],
      sleep=S2SLEEP)
stamp(7)
for n in range(4):
    e(f"v_mov_b32 v{VN+4*n+1}, v{VN+4*n}")
    e(f"v_mov_b32 v{VN+4*n+3}, v{VN+4*n+2}")
for n in range(4):
    e(f"v_mov_b32_dpp v{VN+4*n+1}, v{VN+4*n} row_half_mirror row_mask:0xf bank_mask:0x5")
    e(f"v_mov_b32_dpp v{VN+4*n+3}, v{VN+4*n+2} row_half_mirror row_mask:0xf bank_mask:0x5")
e(f"v_max3_f32 v20, v{VN+1}, v{VN+5}, v{VN+9}")
e(f"v_max_f32 v20, v{VN+13}, v20")
for n in range(4):
    e(f"v_lshlrev_b32 v{112+4*n}, 16, v{VN+4*n}")
    e(f"v_and_b32 v{113+4*n}, 0xffff0000, v{VN+4*n}")
    e(f"v_lshlrev_b32 v{114+4*n}, 16, v{VN+4*n+2}")
    e(f"v_and_b32 v{115+4*n}, 0xffff0000, v{VN+4*n+2}")
dpp_red("v_max_f32", [20], "row_ror:8")
swap_red("v_max_f32", [20], [21], 16)
swap_red("v_max_f32", [20], [21], 32)
for n in range(4):
    e(f"v_sub_f32 v{VN+4*n+1}, v{VN+4*n+1}, v20")
for n in range(4):
    e(f"v_mul_f32 v{VN+4*n+1}, s{S_C}, v{VN+4*n+1}")
for n in range(4):
    e(f"v_exp_f32 v{VN+4*n+1}, v{VN+4*n+1}")
e("s_nop 0")
e(f"v_mul_f32 v20, v{VN+1}, v{VN+3}")
for j in range(4):
    e(f"v_mul_f32 v{21+j}, v{VN+1}, v{112+j}")
for n in range(1, 4):
    e(f"v_fmac_f32 v20, v{VN+4*n+1}, v{VN+4*n+3}")
    for j in range(4):
        e(f"v_fmac_f32 v{21+j}, v{VN+4*n+1}, v{112+4*n+j}")
R5v = [20, 21, 22, 23, 24]
dpp_red("v_add_f32", R5v, "row_ror:8")
swap_red("v_add_f32", R5v, [112, 113, 114, 115, 116], 16)
swap_red("v_add_f32", R5v, [112, 113, 114, 115, 116], 32)
e("v_rcp_f32 v20, v20")
e("s_nop 0")
for j in range(4):
    e(f"v_mul_f32 v{21+j}, v{21+j}, v20")
e("v_cvt_pk_bf16_f32 v21, v21, v22")
e("v_cvt_pk_bf16_f32 v23, v23, v24")
e("s_nop 1")
e("v_mov_b32_dpp v21, v23 row_half_mirror row_mask:0xf bank_mask:0xa")
e("s_nop 0")
for t in range(4):
    e(f"ds_bpermute_b32 v{VN+t}, v{14+t}, v21")
e("s_waitcnt lgkmcnt(0)")
for t in range(4):
    e(f"v_perm_b32 v{VN+t}, v{VN+t}, v{VN+t}, v29")
AR2 = 100
for t in range(4):
    for r in range(4):
        e(f"v_and_b32 v{AR2+4*t+r}, v{VN+t}, v{vM[r]}")
e("s_nop 1")
DAr = [116, 120, 124, 4]
for t in range(4):
    for blk in range(4):
        idx = 4 * t + blk
        dd = DAr[blk]
        cc = "0" if t == 0 else f"v[{dd}:{dd+3}]"
        e(f"v_mfma_f32_16x16x32_bf16 v[{dd}:{dd+3}], v[{AR2+4*t}:{AR2+4*t+3}], v[{WO+4*idx}:{WO+4*idx+3}], {cc}")
e("s_nop 7")
publish_D(DAr, 30, 96)
stamp(8)
e("s_cmp_ge_u32 s2, 28")
e("s_cbranch_scc1 L_a_end")
e("v_and_b32 v20, 7, v1")
e("v_lshlrev_b32 v20, 3, v20")
lds_spin("L_a_g", 20, L_FG, 22, sleep=0)
stamp(9)
for w in range(8):
    e(f"ds_read_b64 v[{32+2*w}:{33+2*w}], v20 offset:{L_GS+64*w}")
e("v_lshlrev_b32 v22, 16, v27")
e("v_and_b32 v23, 0xffff0000, v27")
e("v_lshlrev_b32 v24, 16, v28")
e("v_and_b32 v25, 0xffff0000, v28")
e("s_waitcnt lgkmcnt(0)")
for h2 in range(2):
    d = 20 if h2 == 0 else 18
    b0 = 32 + 8 * h2
    for j in range(2):
        e(f"v_add_f32 v{d+j}, v{b0+j}, v{b0+2+j}")
        e(f"v_add_f32 v{b0+4+j}, v{b0+4+j}, v{b0+6+j}")
    for j in range(2):
        e(f"v_add_f32 v{d+j}, v{d+j}, v{b0+4+j}")
for j in range(2):
    bf16r(20 + j, 20 + j)
    bf16r(18 + j, 18 + j)
for j in range(2):
    e(f"v_add_f32 v{20+j}, v{20+j}, v{22+j}")
    e(f"v_add_f32 v{18+j}, v{18+j}, v{24+j}")
for j in range(2):
    bf16r(20 + j, 20 + j)
    bf16r(18 + j, 18 + j)
for j in range(2):
    e(f"v_add_f32 v{20+j}, v{20+j}, v{18+j}")
e("v_cvt_pk_bf16_f32 v20, v20, v21")
e("s_mov_b32 exec_lo, 0xff")
e("s_mov_b32 exec_hi, 0")
e(f"buffer_store_dword v20, v26, s[{R4}:{R4+3}], 0 offen")
e("s_cmp_lg_u32 s2, 0")
e("s_cbranch_scc1 L_a_end")
e("s_mov_b32 exec_lo, 1")
e(f"v_mov_b32 v21, s{S_TA}")
e("v_mov_b32 v22, 0")
e(f"buffer_store_dword v21, v22, {WSR}, 0 offen sc1")
lab("L_a_end")
stamp(10)
dump_stamps(11, 2, 3)
e("s_endpgm")

lab("L_ctrlB")
c("================= control B =================")
e("s_cmp_ge_u32 s2, 224")
e("s_cbranch_scc1 L_end")
e("s_setprio 2")
srd(R0, sX, 896)
srd(R1, sW1, 448 * 3584)
srd(R3, sW2, 1792 * 896)
srd(R4, sB1, 3584)
e("v_lshlrev_b32 v2, 4, v1")
e(f"buffer_load_dwordx4 v[4:7], v2, s[{R0}:{R0+3}], 0 offen")
e("v_lshrrev_b32 v3, 3, v1")
e(f"s_movk_i32 s{S_T2}, 3584")
e(f"v_mul_lo_u32 v8, v3, s{S_T2}")
e("v_and_b32 v9, 7, v1")
e("v_lshl_add_u32 v8, v9, 4, v8")
e(f"s_mul_i32 s{S_T0}, s{S_H}, {56*3584}")
e(f"s_lshl_b32 s{S_T1}, s{S_S}, 7")
e(f"s_add_u32 s{S_T0}, s{S_T0}, s{S_T1}")
e(f"v_add_u32 v8, s{S_T0}, v8")
W1 = 32
for t in range(7):
    st = S_T2 + (t & 1)
    e(f"s_mov_b32 s{st}, {t*8*3584}")
    e(f"buffer_load_dwordx4 v[{W1+4*t}:{W1+4*t+3}], v8, s[{R1}:{R1+3}], s{st} offen nt")
e("v_and_b32 v31, 7, v1")
e("v_lshlrev_b32 v31, 6, v31")
e("v_lshrrev_b32 v30, 5, v1")
e("v_lshl_add_u32 v31, v30, 5, v31")
e("v_bfe_u32 v30, v1, 4, 1")
e("v_lshl_add_u32 v31, v30, 4, v31")
e(f"s_lshl_b32 s{S_T0}, s2, 9")
e(f"s_add_u32 s{S_T0}, s{S_T0}, {HB}")
e(f"v_add_u32 v31, s{S_T0}, v31")
if PRER:
    e(f"buffer_load_dwordx4 v[100:103], v31, {WSR}, 0 offen sc1")
e("s_barrier")
e("v_cmp_gt_u32 vcc, 56, v1")
e("s_nop 1")
e("v_cndmask_b32 v9, 0, 1.0, vcc")
e(f"s_waitcnt vmcnt({7+NX})")
stamp(1)
F = list(range(10, 18))
for k in range(4):
    e(f"v_lshlrev_b32 v{F[2*k]}, 16, v{4+k}")
    e(f"v_and_b32 v{F[2*k+1]}, 0xffff0000, v{4+k}")
layernorm(F, [18, 19, 20, 21], 9)
layernorm(F, [18, 19, 20, 21], 9)
e("v_lshlrev_b32 v18, 5, v1")
e(f"ds_write_b128 v18, v[10:13] offset:{L_YB}")
e(f"ds_write_b128 v18, v[14:17] offset:{L_YB+16}")
e(f"s_mul_i32 s{S_T0}, s{S_H}, {56*4}")
e(f"v_lshl_add_u32 v18, v3, 2, s{S_T0}")
YP = 88
for t in range(7):
    e(f"ds_read_b32 v{YP+t}, v18 offset:{L_YB+32*t}")
AC = 104
for k in range(8):
    e(f"v_mov_b32 v{AC+k}, 0")
e("s_waitcnt lgkmcnt(0)")
tags()
for t in range(7):
    e(f"s_waitcnt vmcnt({6-t+NX})")
    for k in range(4):
        e(f"v_lshlrev_b32 v{112+2*k}, 16, v{W1+4*t+k}")
        e(f"v_and_b32 v{113+2*k}, 0xffff0000, v{W1+4*t+k}")
    for k in range(8):
        e(f"v_fmac_f32 v{AC+k}, v{112+k}, v{YP+t}")
e("s_nop 1")
for k in range(4):
    e(f"v_permlane32_swap_b32 v{AC+k}, v{AC+k+4}")
for k in range(4):
    e(f"v_add_f32 v{AC+k}, v{AC+k}, v{AC+k+4}")
e("s_nop 1")
for k in range(2):
    e(f"v_permlane16_swap_b32 v{AC+k}, v{AC+k+2}")
for k in range(2):
    e(f"v_add_f32 v{AC+k}, v{AC+k}, v{AC+k+2}")
e("s_nop 1")
dpp_red("v_add_f32", [AC, AC + 1], "row_ror:8")
e(f"v_mov_b32 v112, v{AC}")
e(f"v_mov_b32 v113, s{S_TA}")
e(f"v_mov_b32 v114, v{AC+1}")
e(f"v_mov_b32 v115, s{S_TB}")
e("s_mov_b32 exec_lo, 0x00ff00ff")
e("s_mov_b32 exec_hi, 0x00ff00ff")
e(f"buffer_store_dwordx4 v[112:115], v31, {WSR}, 0 offen sc1")
e("s_mov_b64 exec, -1")
stamp(2)
e("v_and_b32 v23, 15, v1")
e("v_lshrrev_b32 v24, 4, v1")
e(f"s_movk_i32 s{S_T2}, 896")
e(f"v_mul_lo_u32 v25, v24, s{S_T2}")
e("v_lshl_add_u32 v25, v23, 4, v25")
e(f"s_mul_i32 s{S_T0}, s2, {8*896}")
e(f"v_add_u32 v25, s{S_T0}, v25")
W2 = 32
e(f"s_movk_i32 s{S_T3}, 3584")
for t in range(2):
    for blk in range(4):
        idx = 4 * t + blk
        so = "0" if t == 0 else f"s{S_T3}"
        e(f"buffer_load_dwordx4 v[{W2+4*idx}:{W2+4*idx+3}], v25, s[{R3}:{R3+3}], {so} offen offset:{blk*256} nt")
e("v_bfe_u32 v26, v1, 3, 2")
e("v_lshlrev_b32 v26, 2, v26")
e(f"s_lshl_b32 s{S_T0}, s2, 4")
e(f"v_add_u32 v26, s{S_T0}, v26")
e(f"buffer_load_dword v27, v26, s[{R4}:{R4+3}], 0 offen")
vM = [10, 11, 12, 13]
sel_masks(vM, 1, 14, 15, True)
e("v_lshrrev_b32 v14, 1, v24")
e("v_lshlrev_b32 v14, 5, v14")
e("v_add_u32 v15, 64, v14")
e("v_and_b32 v29, 1, v24")
e("v_cmp_eq_u32 vcc, 1, v29")
e("v_mov_b32 v29, 0x01000100")
e("v_mov_b32 v28, 0x03020302")
e("v_cndmask_b32 v29, v29, v28, vcc")
pub_addr(FBB, 30, 31)
e("v_and_b32 v18, 7, v1")
e("v_lshlrev_b32 v18, 9, v18")
e("v_bfe_u32 v19, v1, 3, 2")
e("v_lshl_add_u32 v18, v19, 4, v18")
e(f"s_lshl_b32 s{S_T0}, s{S_S}, 12")
e(f"s_lshl_b32 s{S_T1}, s{S_H}, 6")
e(f"s_add_u32 s{S_T0}, s{S_T0}, s{S_T1}")
e(f"s_add_u32 s{S_T0}, s{S_T0}, {HB}")
e(f"v_add_u32 v18, s{S_T0}, v18")
ipoll("L_m_h", [(None, f"buffer_load_dwordx4 v[96:99], v18, {WSR}, 0 offen sc1", 97, 99)])
stamp(3)
e("v_mov_b32 v20, v96")
e("v_mov_b32 v21, v98")
e("s_nop 1")
dpp_red("v_add_f32", [20, 21], "quad_perm:[1,0,3,2]")
dpp_red("v_add_f32", [20, 21], "quad_perm:[2,3,0,1]")
dpp_red("v_add_f32", [20, 21], "row_half_mirror")
bf16r(20, 20)
bf16r(21, 21)
e("v_lshlrev_b32 v22, 16, v27")
e("v_and_b32 v23, 0xffff0000, v27")
e("v_add_f32 v20, v20, v22")
e("v_add_f32 v21, v21, v23")
bf16r(20, 20)
bf16r(21, 21)
K0 = 0.7978845608028654
K1 = 0.044715
e(f"s_mov_b32 s{S_T0}, 0x{f32hex(K1)}")
e(f"s_mov_b32 s{S_T1}, 0x{f32hex(-2.0*K0*LOG2E)}")
for (x, t) in ((20, 22), (21, 23)):
    e(f"v_mul_f32 v{t}, v{x}, v{x}")
    e(f"v_mul_f32 v{t}, v{t}, v{x}")
    e(f"v_fma_f32 v{t}, v{t}, s{S_T0}, v{x}")
    e(f"v_mul_f32 v{t}, s{S_T1}, v{t}")
    e(f"v_exp_f32 v{t}, v{t}")
    e("s_nop 0")
    e(f"v_add_f32 v{t}, 1.0, v{t}")
    e(f"v_rcp_f32 v{t}, v{t}")
    e("s_nop 0")
    e(f"v_mul_f32 v{x}, v{x}, v{t}")
e("v_cvt_pk_bf16_f32 v21, v20, v21")
e("s_nop 0")
e("ds_bpermute_b32 v96, v14, v21")
e("ds_bpermute_b32 v97, v15, v21")
e("s_waitcnt lgkmcnt(0)")
e("v_perm_b32 v96, v96, v96, v29")
e("v_perm_b32 v97, v97, v97, v29")
AR3 = 100
for t in range(2):
    for r in range(4):
        e(f"v_and_b32 v{AR3+4*t+r}, v{96+t}, v{vM[r]}")
e("s_nop 1")
DBr = [112, 116, 120, 124]
for t in range(2):
    for blk in range(4):
        idx = 4 * t + blk
        dd = DBr[blk]
        cc = "0" if t == 0 else f"v[{dd}:{dd+3}]"
        e(f"v_mfma_f32_16x16x32_bf16 v[{dd}:{dd+3}], v[{AR3+4*t}:{AR3+4*t+3}], v[{W2+4*idx}:{W2+4*idx+3}], {cc}")
e("s_nop 7")
publish_D(DBr, 30, 96)
stamp(4)
dump_stamps(5, 2, 3)
lab("L_end")
e("s_endpgm")

out.append('.section .rodata,"a"')
out.append(".p2align 6")
out.append(f".amdhsa_kernel {NAME}_kernel")
out.append("  .amdhsa_next_free_vgpr 128")
out.append("  .amdhsa_next_free_sgpr 102")
out.append("  .amdhsa_accum_offset 128")
out.append("  .amdhsa_group_segment_fixed_size 0")
out.append("  .amdhsa_kernarg_size 104")
out.append("  .amdhsa_user_sgpr_count 2")
out.append("  .amdhsa_user_sgpr_kernarg_segment_ptr 1")
out.append("  .amdhsa_system_sgpr_workgroup_id_x 1")
out.append("  .amdhsa_float_denorm_mode_32 3")
out.append("  .amdhsa_float_denorm_mode_16_64 3")
out.append(".end_amdhsa_kernel")
open(OUTFILE, "w").write("\n".join(out) + "\n")
print("wrote", OUTFILE, len(out), "lines")
```

```python
import struct
import sys

NAME = "parallel_sum__sliding_block_cached__mixer_channel_mlp__decode"
DIAG = False
OPT = {}
for a in sys.argv[1:]:
    if a == "diag":
        DIAG = True
    elif "=" in a:
        k, v = a.split("=")
        OPT[k] = v

THR = int(OPT.get("thr", "4"))
NPRE = int(OPT.get("npre", "2"))
S2SLEEP = int(OPT.get("s2sleep", "1"))
FSLEEP = int(OPT.get("fsleep", "1"))
KFL = int(OPT.get("kfl", "11"))
KFLAG = int(OPT.get("kflag", "0"))
PRER = OPT.get("prer", "1") == "1"
WSOFF = int(OPT.get("wsoff", "0")) << 20
SPARE = int(OPT.get("spare", "5"))
LATEW = OPT.get("latew", "1") == "1"
QEARLY = OPT.get("qearly", "0") == "1"
OUTFILE = OPT.get("out", "cdna_kernels/%s.s" % NAME)

QB = 0x10000
HB = 0x20000
OB = 0x40000
OST = 4224
FAB = 0x200000
FBB = 0x280000
RST = 256 * 64 + 128
COPY = 0x400000
NFAST = int(OPT.get("nfast", "6"))
DIAGB = 0x1000000
WS_BYTES = 0x2000000

L_Q = 0x0000
L_XA = 0x0400
L_YB = 0x0800
L_FQ = 0x1000
L_FK = 0x1008
L_FI = 0x1010
L_FW = 0x1040
L_FG = 0x1080
L_ST = 0x1100
L_GS = 0x1200
L_O = 0x2000
LDS_BYTES = 0x6000

POLL_MAX = 200000

out = []


def e(s):
    out.append("    " + s)


def lab(s):
    out.append(s + ":")


def c(s):
    out.append("    ; " + s)


def f32hex(x):
    return "%08x" % struct.unpack("<I", struct.pack("<f", x))[0]


sX, sK, sV, sWQ, sWO, sW1, sB1, sW2, sB2, sOUT, sWS = 16, 18, 20, 22, 24, 28, 30, 32, 34, 36, 40
S_EP = 42
S_W = 3
R0, R1, RWS, R3, R4, R5 = 44, 48, 52, 56, 60, 64
S_TA, S_TB = 68, 69
S_H, S_S = 70, 71
S_T0, S_T1, S_T2, S_T3 = 72, 73, 74, 75
S_C = 76
S_CNT = 77
S_M0, S_M1 = 78, 79
S_STAMP = 80
S_BW = 43
S_CP = 38
S_CPC = 39
MASKS = [4, 6, 8, 10, 12, 14, 16, 18, 20, 22, 24, 26, 28, 30, 32, 34]
WSR = f"s[{RWS}:{RWS+3}]"


def srd(r, ptr, nbytes, off_sgpr=None):
    if off_sgpr is None:
        e(f"s_mov_b32 s{r}, s{ptr}")
        e(f"s_mov_b32 s{r+1}, s{ptr+1}")
    else:
        e(f"s_add_u32 s{r}, s{ptr}, s{off_sgpr}")
        e(f"s_addc_u32 s{r+1}, s{ptr+1}, 0")
    e(f"s_mov_b32 s{r+2}, {nbytes}")
    e(f"s_mov_b32 s{r+3}, 0x00020000")


def stamp(idx):
    if not DIAG:
        return
    e("s_memrealtime s[100:101]")
    e("s_waitcnt lgkmcnt(0)")
    e(f"s_mov_b32 s{S_STAMP+idx}, s100")


def dump_stamps(n, vtmp, vtmp2):
    if not DIAG:
        return
    e("s_mov_b64 exec, -1")
    e(f"s_lshl_b32 s{S_T0}, s2, 10")
    e(f"s_lshl_b32 s{S_T1}, s{S_W}, 6")
    e(f"s_add_u32 s{S_T0}, s{S_T0}, s{S_T1}")
    e(f"s_add_u32 s{S_T0}, s{S_T0}, {DIAGB}")
    e(f"v_mov_b32 v{vtmp}, s{S_T0}")
    for i in range(n):
        e(f"v_mov_b32 v{vtmp2}, s{S_STAMP+i}")
        e(f"buffer_store_dword v{vtmp2}, v{vtmp}, {WSR}, 0 offen offset:{4*i}")
        e("s_nop 1")


def tags():
    e(f"s_mul_i32 s{S_TA}, s{S_EP}, 1664525")
    e(f"s_add_u32 s{S_TA}, s{S_TA}, 1013904223")
    e(f"s_xor_b32 s{S_TB}, s{S_EP}, 0x5bd1e995")
    e(f"s_mul_i32 s{S_TB}, s{S_TB}, 0x9E3779B1")
    e(f"s_add_u32 s{S_TB}, s{S_TB}, 0x7F4A7C15")


DPPM = "row_mask:0xf bank_mask:0xf"


def dpp_red(op, regs, ctrl):
    for r in regs:
        e(f"{op}_dpp v{r}, v{r}, v{r} {ctrl} {DPPM}")
    if len(regs) < 3:
        e("s_nop %d" % (2 - len(regs)))


def swap_red(op, regs, tmps, which):
    for r, t in zip(regs, tmps):
        e(f"v_mov_b32 v{t}, v{r}")
    e("s_nop 1")
    for r, t in zip(regs, tmps):
        e(f"v_permlane{which}_swap_b32 v{r}, v{t}")
    for r, t in zip(regs, tmps):
        e(f"{op} v{r}, v{r}, v{t}")
    if len(regs) < 3:
        e("s_nop %d" % (2 - len(regs)))


def wave_red(op, regs, tmps):
    e("s_nop 1")
    dpp_red(op, regs, "quad_perm:[1,0,3,2]")
    dpp_red(op, regs, "quad_perm:[2,3,0,1]")
    dpp_red(op, regs, "row_half_mirror")
    dpp_red(op, regs, "row_mirror")
    swap_red(op, regs, tmps, 16)
    swap_red(op, regs, tmps, 32)


def bf16r(dst, src):
    e(f"v_cvt_pk_bf16_f32 v{dst}, v{src}, v{src}")
    e(f"v_lshlrev_b32 v{dst}, 16, v{dst}")


def layernorm(f, t, vvalid):
    a, b, d, g = t[0], t[1], t[2], t[3]
    e(f"v_add_f32 v{a}, v{f[0]}, v{f[1]}")
    e(f"v_add_f32 v{b}, v{f[2]}, v{f[3]}")
    e(f"v_add_f32 v{d}, v{f[4]}, v{f[5]}")
    e(f"v_add_f32 v{g}, v{f[6]}, v{f[7]}")
    e(f"v_add_f32 v{a}, v{a}, v{b}")
    e(f"v_add_f32 v{d}, v{d}, v{g}")
    e(f"v_add_f32 v{a}, v{a}, v{d}")
    wave_red("v_add_f32", [a], [b])
    e(f"v_mul_f32 v{a}, 0x{f32hex(1.0/448.0)}, v{a}")
    e(f"v_mov_b32 v{d}, 0")
    for i in range(8):
        e(f"v_sub_f32 v{b}, v{f[i]}, v{a}")
        e(f"v_fmac_f32 v{d}, v{b}, v{b}")
    e(f"v_mul_f32 v{d}, v{d}, v{vvalid}")
    wave_red("v_add_f32", [d], [b])
    e(f"v_mul_f32 v{d}, 0x{f32hex(1.0/448.0)}, v{d}")
    bf16r(a, a)
    bf16r(d, d)
    e(f"v_add_f32 v{d}, 0x{f32hex(1e-5)}, v{d}")
    bf16r(d, d)
    e(f"v_sqrt_f32 v{d}, v{d}")
    e("s_nop 0")
    bf16r(d, d)
    e(f"v_rcp_f32 v{d}, v{d}")
    e("s_nop 0")
    for i in range(8):
        e(f"v_sub_f32 v{f[i]}, v{f[i]}, v{a}")
        bf16r(f[i], f[i])
        e(f"v_mul_f32 v{f[i]}, v{f[i]}, v{d}")
        bf16r(f[i], f[i])
        e(f"v_mul_f32 v{f[i]}, v{f[i]}, v{vvalid}")


def ipoll(label, loads, sleep=0, dual=False):
    assert len(loads) <= len(MASKS)
    if OPT.get("nohand") == "2":
        return
    if OPT.get("nohand") == "1":
        for (pre, ld, va, vb) in loads:
            if pre:
                e(pre)
            e(ld)
        e("s_waitcnt vmcnt(0)")
        return
    e(f"s_mov_b32 s{S_CNT}, 0")
    if dual:
        e(f"s_mov_b32 s{S_CP}, 0")
    for (pre, ld, va, vb) in loads:
        if pre:
            e(pre)
        e(ld)
    e(f"s_branch {label}_chk")
    lab(label)
    if dual:
        e(f"s_cmp_ge_u32 s{S_CNT}, {NFAST}")
        e(f"s_cselect_b32 s{S_CPC}, {COPY}, 0")
        e(f"s_xor_b32 s{S_CP}, s{S_CP}, s{S_CPC}")
    for i, (pre, ld, va, vb) in enumerate(loads):
        m = MASKS[i]
        e(f"s_cmp_eq_u64 s[{m}:{m+1}], 0")
        e(f"s_cbranch_scc1 {label}_s{i}")
        e(f"s_mov_b64 exec, s[{m}:{m+1}]")
        if pre:
            e(pre)
        e(ld)
        lab(f"{label}_s{i}")
    e("s_mov_b64 exec, -1")
    lab(f"{label}_chk")
    e("s_waitcnt vmcnt(0)")
    for i, (pre, ld, va, vb) in enumerate(loads):
        m = MASKS[i]
        e(f"v_cmp_ne_u32 s[{m}:{m+1}], s{S_TA}, v{va}")
        e(f"v_cmp_ne_u32 vcc, s{S_TB}, v{vb}")
        e(f"s_or_b64 s[{m}:{m+1}], s[{m}:{m+1}], vcc")
        if i == 0:
            e(f"s_mov_b64 s[{S_M0}:{S_M1}], s[{m}:{m+1}]")
        else:
            e(f"s_or_b64 s[{S_M0}:{S_M1}], s[{S_M0}:{S_M1}], s[{m}:{m+1}]")
    e(f"s_cmp_eq_u64 s[{S_M0}:{S_M1}], 0")
    e(f"s_cbranch_scc1 {label}_done")
    if sleep:
        e(f"s_sleep {sleep}")
    e(f"s_add_u32 s{S_CNT}, s{S_CNT}, 1")
    e(f"s_cmp_lt_u32 s{S_CNT}, {POLL_MAX}")
    e(f"s_cbranch_scc1 {label}")
    lab(label + "_done")


def lds_spin(label, vaddr, off, vt, sleep=1):
    e(f"s_mov_b32 s{S_CNT}, 0")
    lab(label)
    e(f"ds_read_b64 v[{vt}:{vt+1}], v{vaddr} offset:{off}")
    e("s_waitcnt lgkmcnt(0)")
    e(f"v_cmp_eq_u32 vcc, s{S_TA}, v{vt}")
    e(f"v_cmp_eq_u32 s[{S_M0}:{S_M1}], s{S_TB}, v{vt+1}")
    e(f"s_and_b64 vcc, vcc, s[{S_M0}:{S_M1}]")
    e("s_cmp_eq_u64 vcc, -1")
    e(f"s_cbranch_scc1 {label}_done")
    if sleep:
        e(f"s_sleep {sleep}")
    e(f"s_add_u32 s{S_CNT}, s{S_CNT}, 1")
    e(f"s_cmp_lt_u32 s{S_CNT}, {POLL_MAX*10}")
    e(f"s_cbranch_scc1 {label}")
    lab(label + "_done")


def sel_masks(vm, vlane, t0, t1, rows8):
    e(f"v_and_b32 v{t0}, 1, v{vlane}")
    e(f"v_lshlrev_b32 v{t0}, 4, v{t0}")
    e(f"v_mov_b32 v{t1}, 0xffff")
    e(f"v_lshlrev_b32 v{t1}, v{t0}, v{t1}")
    if rows8:
        e(f"v_bfe_u32 v{t0}, v{vlane}, 1, 3")
    else:
        e(f"v_bfe_u32 v{t0}, v{vlane}, 1, 2")
    for r in range(4):
        e(f"v_cmp_eq_u32 vcc, {r}, v{t0}")
        e("s_nop 1")
        e(f"v_cndmask_b32 v{vm[r]}, 0, v{t1}, vcc")


def pub_addr(base, va, vt, sid="s2"):
    e(f"v_bfe_u32 v{va}, v1, 1, 3")
    e(f"v_lshrrev_b32 v{vt}, 5, v1")
    e(f"v_lshl_add_u32 v{va}, v{vt}, 3, v{va}")
    e(f"v_mul_u32_u24 v{va}, {RST}, v{va}")
    e(f"v_and_b32 v{vt}, 1, v1")
    e(f"v_lshl_add_u32 v{va}, v{vt}, 5, v{va}")
    e(f"v_bfe_u32 v{vt}, v1, 4, 1")
    e(f"v_lshl_add_u32 v{va}, v{vt}, 4, v{va}")
    e(f"s_lshl_b32 s{S_T0}, {sid}, 6")
    e(f"s_add_u32 s{S_T0}, s{S_T0}, {base}")
    e(f"v_add_u32 v{va}, s{S_T0}, v{va}")


def publish_D(Dr, va, tb):
    for p in range(2):
        d0, d1 = Dr[2 * p], Dr[2 * p + 1]
        e(f"v_cvt_pk_bf16_f32 v{tb+4*p}, v{d0}, v{d0+1}")
        e(f"v_cvt_pk_bf16_f32 v{tb+4*p+2}, v{d0+2}, v{d0+3}")
        e(f"v_cvt_pk_bf16_f32 v{d1}, v{d1}, v{d1+1}")
        e(f"v_cvt_pk_bf16_f32 v{d1+2}, v{d1+2}, v{d1+3}")
        e(f"v_mov_b32 v{tb+4*p+1}, s{S_TA}")
        e(f"v_mov_b32 v{tb+4*p+3}, s{S_TB}")
    e(f"s_mov_b32 s{S_T2}, {16*RST}")
    for p in range(2):
        d1 = Dr[2 * p + 1]
        e(f"v_permlane32_swap_b32 v{tb+4*p}, v{d1}")
        e(f"v_permlane32_swap_b32 v{tb+4*p+2}, v{d1+2}")
    e(f"buffer_store_dwordx4 v[{tb}:{tb+3}], v{va}, {WSR}, 0 offen sc1")
    e("s_mov_b32 exec_hi, 0x00ff00ff")
    e(f"buffer_store_dwordx4 v[{tb+4}:{tb+7}], v{va}, {WSR}, s{S_T2} offen sc1")
    e("s_mov_b64 exec, -1")


LOG2E = 1.4426950408889634

hdr = open("cdna_kernels/%s.s.ref" % NAME).read().split("\n")
for line in hdr:
    if line.startswith("; @launch"):
        break
    out.append(line)
out.append(f"; @launch grid=(256,1,1) block=(640,1,1) lds={LDS_BYTES}")
out.append('.amdgcn_target "amdgcn-amd-amdhsa--gfx950"')
out.append(".text")
out.append(f".globl {NAME}_kernel")
out.append(".p2align 8")
out.append(f".type {NAME}_kernel,@function")
lab(f"{NAME}_kernel")
e("s_cmp_ge_u32 s2, 256")
e("s_cbranch_scc1 L_end")
stamp(0)
e("s_load_dwordx16 s[16:31], s[0:1], 0")
e("s_load_dwordx8 s[32:39], s[0:1], 64")
e("s_load_dwordx2 s[40:41], s[0:1], 96")
e("v_lshrrev_b32 v1, 6, v0")
e("v_and_b32 v2, 63, v0")
e("s_nop 0")
e(f"v_readfirstlane_b32 s{S_W}, v1")
e("v_mov_b32 v1, v2")
e("v_lshlrev_b32 v2, 2, v2")
e("v_mov_b32 v3, 0")
e(f"ds_write_b32 v2, v3 offset:{L_FQ}")
e(f"s_and_b32 s{S_H}, s2, 7")
e(f"s_lshr_b32 s{S_S}, s2, 3")
e(f"s_mov_b32 s{S_C}, 0x{f32hex(0.0625*LOG2E)}")
e("s_waitcnt lgkmcnt(0)")
if WSOFF:
    e(f"s_add_u32 s{sWS}, s{sWS}, {WSOFF}")
    e(f"s_addc_u32 s{sWS+1}, s{sWS+1}, 0")
e(f"s_load_dword s{S_EP}, s[{sWS}:{sWS+1}], 0")
srd(RWS, sWS, WS_BYTES)
e(f"s_cmp_eq_u32 s{S_W}, 0")
e("s_cbranch_scc1 L_ctrlA")
e(f"s_cmp_eq_u32 s{S_W}, 1")
e("s_cbranch_scc1 L_ctrlB")

c("================= bulk wave =================")
e(f"s_sub_u32 s{S_BW}, s{S_W}, 2")
e(f"s_lshl_b32 s{S_T0}, s{S_H}, 24")
e(f"s_lshl_b32 s{S_T1}, s{S_S}, 16")
e(f"s_add_u32 s{S_T0}, s{S_T0}, s{S_T1}")
e(f"s_add_u32 s{S_T0}, s{S_T0}, {28672*512}")
srd(R0, sK, 65536, S_T0)
srd(R1, sV, 65536, S_T0)
e(f"s_mov_b32 s{S_T3}, 4096")
vI, vG, vKo, vVo = 2, 3, 4, 5
e(f"v_and_b32 v{vI}, 15, v1")
e(f"v_lshrrev_b32 v{vG}, 4, v1")
e(f"s_lshl_b32 s{S_T1}, s{S_BW}, 13")
e(f"v_lshlrev_b32 v{vKo}, 9, v{vI}")
e(f"v_lshl_add_u32 v{vKo}, v{vG}, 4, v{vKo}")
e(f"v_add_u32 v{vKo}, s{S_T1}, v{vKo}")
e(f"v_lshlrev_b32 v{vVo}, 9, v{vG}")
e(f"v_lshl_add_u32 v{vVo}, v{vI}, 4, v{vVo}")
e(f"v_add_u32 v{vVo}, s{S_T1}, v{vVo}")
KR, VR, QR = 32, 64, 96


def kflag():
    e("s_waitcnt lgkmcnt(0)")
    tags()
    e(f"s_cmp_lg_u32 s{S_BW}, {KFLAG}")
    e("s_cbranch_scc1 L_b_nok")
    e(f"v_mov_b32 v6, s{S_TA}")
    e(f"v_mov_b32 v7, s{S_TB}")
    e("v_mov_b32 v8, 0")
    e(f"ds_write_b64 v8, v[6:7] offset:{L_FK}")
    lab("L_b_nok")


for kk in range(8):
    if kk == NPRE:
        e("s_barrier")
    e(f"buffer_load_dwordx4 v[{KR+4*kk}:{KR+4*kk+3}], v{vKo}, s[{R0}:{R0+3}], 0 offen offset:{kk*64} nt")
    if kk + 1 >= THR:
        e(f"s_waitcnt vmcnt({THR-1})")
    if kk == KFL:
        kflag()
for t in range(4):
    for half in range(2):
        so = "0" if t < 2 else f"s{S_T3}"
        idx = 2 * t + half
        e(f"buffer_load_dwordx4 v[{VR+4*idx}:{VR+4*idx+3}], v{vVo}, s[{R1}:{R1+3}], {so} offen offset:{(t&1)*2048+half*256} nt")
        if idx < 7:
            e(f"s_waitcnt vmcnt({THR-1})")
        if 8 + idx == KFL:
            kflag()
e(f"s_cmp_lg_u32 s{S_BW}, 7")
e("s_cbranch_scc1 L_b_noi")
e(f"v_mov_b32 v6, s{S_TA}")
e(f"v_mov_b32 v7, s{S_TB}")
e("v_mov_b32 v8, 0")
e(f"ds_write_b64 v8, v[6:7] offset:{L_FI}")
lab("L_b_noi")
stamp(1)
vM = [6, 7, 8, 9]
sel_masks(vM, 1, 10, 11, False)
vQa, vZ = 10, 11
e(f"v_lshrrev_b32 v{vQa}, 3, v{vI}")
e(f"v_lshlrev_b32 v{vQa}, 9, v{vQa}")
e(f"v_lshl_add_u32 v{vQa}, v{vG}, 4, v{vQa}")
e(f"v_mov_b32 v{vZ}, 0")
lds_spin("L_b_q", vZ, L_FQ, 12)
stamp(2)
for kk in range(8):
    e(f"ds_read_b128 v[{QR+4*kk}:{QR+4*kk+3}], v{vQa} offset:{L_Q+kk*64}")
e("s_waitcnt vmcnt(8) lgkmcnt(0)")
stamp(3)
D = 12
for kk in range(8):
    cc = "0" if kk == 0 else f"v[{D}:{D+3}]"
    e(f"v_mfma_f32_16x16x32_bf16 v[{D}:{D+3}], v[{KR+4*kk}:{KR+4*kk+3}], v[{QR+4*kk}:{QR+4*kk+3}], {cc}")
e("s_nop 7")
P = [16, 17, 18, 19]
e(f"v_cvt_pk_bf16_f32 v20, v{D}, v{D+1}")
e(f"v_cvt_pk_bf16_f32 v21, v{D+2}, v{D+3}")
e(f"v_lshlrev_b32 v{P[0]}, 16, v20")
e(f"v_and_b32 v{P[1]}, 0xffff0000, v20")
e(f"v_lshlrev_b32 v{P[2]}, 16, v21")
e(f"v_and_b32 v{P[3]}, 0xffff0000, v21")
vMx, vL = 22, 23
e(f"v_max_f32 v{vMx}, v{P[0]}, v{P[1]}")
e(f"v_max3_f32 v{vMx}, v{P[2]}, v{P[3]}, v{vMx}")
swap_red("v_max_f32", [vMx], [20], 16)
swap_red("v_max_f32", [vMx], [20], 32)
for r in range(4):
    e(f"v_sub_f32 v{P[r]}, v{P[r]}, v{vMx}")
for r in range(4):
    e(f"v_mul_f32 v{P[r]}, s{S_C}, v{P[r]}")
for r in range(4):
    e(f"v_exp_f32 v{P[r]}, v{P[r]}")
e("s_nop 0")
e(f"v_add_f32 v{vL}, v{P[0]}, v{P[1]}")
e(f"v_add_f32 v20, v{P[2]}, v{P[3]}")
e(f"v_add_f32 v{vL}, v{vL}, v20")
for r in range(4):
    e(f"v_cvt_pk_bf16_f32 v{P[r]}, v{P[r]}, v{P[r]}")
swap_red("v_add_f32", [vL], [20], 16)
swap_red("v_add_f32", [vL], [20], 32)
e(f"v_permlane32_swap_b32 v{P[0]}, v{P[2]}")
e(f"v_permlane32_swap_b32 v{P[1]}, v{P[3]}")
e("s_nop 1")
e(f"v_permlane16_swap_b32 v{P[0]}, v{P[1]}")
e(f"v_permlane16_swap_b32 v{P[2]}, v{P[3]}")
AR = 96
for t in range(4):
    for r in range(4):
        e(f"v_and_b32 v{AR+4*t+r}, v{P[t]}, v{vM[r]}")
e(f"v_lshrrev_b32 v20, 3, v{vI}")
e(f"v_lshlrev_b32 v20, 3, v20")
e(f"s_lshl_b32 s{S_T1}, s{S_BW}, 4")
e(f"v_add_u32 v20, s{S_T1}, v20")
e(f"ds_write_b64 v20, v[{vMx}:{vL}] offset:{L_ST}")
e(f"v_lshrrev_b32 v20, 5, v1")
e(f"v_lshlrev_b32 v20, 10, v20")
e(f"v_lshl_add_u32 v20, v{vI}, 5, v20")
e(f"v_and_b32 v21, 1, v{vG}")
e(f"v_lshl_add_u32 v20, v21, 4, v20")
e(f"s_lshl_b32 s{S_T1}, s{S_BW}, 11")
e(f"v_add_u32 v20, s{S_T1}, v20")
e(f"v_mov_b32 v24, s{S_TA}")
e(f"v_mov_b32 v25, s{S_TB}")
e(f"s_lshl_b32 s{S_T1}, s{S_BW}, 3")
e(f"v_mov_b32 v21, s{S_T1}")
e(f"v_and_b32 v26, 7, v1")
e(f"v_lshlrev_b32 v26, 3, v26")
e(f"s_lshr_b32 s{S_T1}, s{S_BW}, 1")
e(f"s_lshl_b32 s{S_T1}, s{S_T1}, 3")
e(f"v_mov_b32 v27, s{S_T1}")
e(f"v_lshrrev_b32 v28, 3, v1")
e(f"v_and_b32 v29, 3, v1")
e(f"v_lshlrev_b32 v30, 6, v28")
e(f"v_lshl_add_u32 v30, v29, 4, v30")
e(f"s_lshl_b32 s{S_T1}, s{S_BW}, 9")
e(f"v_add_u32 v30, s{S_T1}, v30")
e(f"s_lshl_b32 s{S_T0}, s{S_H}, 5")
e(f"s_lshl_b32 s{S_T1}, s{S_BW}, 3")
e(f"s_add_u32 s{S_T0}, s{S_T0}, s{S_T1}")
e(f"s_mul_i32 s{S_T0}, s{S_T0}, {OST}")
e(f"s_lshl_b32 s{S_T1}, s{S_S}, 7")
e(f"s_add_u32 s{S_T0}, s{S_T0}, s{S_T1}")
e(f"s_add_u32 s{S_T0}, s{S_T0}, {OB}")
e(f"v_mul_u32_u24 v28, {OST}, v28")
e(f"v_and_b32 v29, 7, v1")
e(f"v_lshl_add_u32 v28, v29, 4, v28")
e(f"v_add_u32 v28, s{S_T0}, v28")
stamp(4)
DL, DH = 112, 116
for t in range(4):
    for half in range(2):
        idx = 2 * t + half
        e(f"s_waitcnt vmcnt({7-idx})")
        dd = DL if half == 0 else DH
        cc = "0" if t == 0 else f"v[{dd}:{dd+3}]"
        e(f"v_mfma_f32_16x16x32_bf16 v[{dd}:{dd+3}], v[{AR+4*t}:{AR+4*t+3}], v[{VR+4*idx}:{VR+4*idx+3}], {cc}")
stamp(5)
e("s_nop 6")
e(f"ds_write_b128 v20, v[{DL}:{DL+3}] offset:{L_O}")
e("s_nop 0")
e(f"ds_write_b128 v20, v[{DH}:{DH+3}] offset:{L_O+512}")
e(f"ds_write_b64 v21, v[24:25] offset:{L_FW}")
e(f"s_cmp_ge_u32 s{S_BW}, 4")
e("s_cbranch_scc1 L_b_gather")
lds_spin("L_b_w", 26, L_FW, 22, sleep=0)
stamp(6)
ST, OV = 32, 48
for w in range(8):
    e(f"ds_read_b64 v[{ST+2*w}:{ST+2*w+1}], v27 offset:{L_ST+16*w}")
for w in range(8):
    e(f"ds_read_b128 v[{OV+4*w}:{OV+4*w+3}], v30 offset:{L_O+2048*w}")
e("s_waitcnt lgkmcnt(8)")
e(f"v_max3_f32 v12, v{ST}, v{ST+2}, v{ST+4}")
e(f"v_max3_f32 v12, v{ST+6}, v{ST+8}, v12")
e(f"v_max3_f32 v12, v{ST+10}, v{ST+12}, v12")
e(f"v_max_f32 v12, v{ST+14}, v12")
for w in range(8):
    e(f"v_sub_f32 v{ST+2*w}, v{ST+2*w}, v12")
for w in range(8):
    e(f"v_mul_f32 v{ST+2*w}, s{S_C}, v{ST+2*w}")
for w in range(8):
    e(f"v_exp_f32 v{ST+2*w}, v{ST+2*w}")
e("v_cmp_lt_u32 vcc, 3, v29")
e(f"v_mul_f32 v13, v{ST}, v{ST+1}")
for w in range(1, 8):
    e(f"v_fmac_f32 v13, v{ST+2*w}, v{ST+2*w+1}")
e("s_waitcnt lgkmcnt(0)")
for j in range(4):
    e(f"v_mul_f32 v{16+j}, v{ST}, v{OV+j}")
for w in range(1, 8):
    for j in range(4):
        e(f"v_fmac_f32 v{16+j}, v{ST+2*w}, v{OV+4*w+j}")
e("v_cvt_pk_bf16_f32 v16, v16, v17")
e("v_cvt_pk_bf16_f32 v18, v18, v19")
e("v_mov_b32 v17, v24")
e("v_mov_b32 v19, v25")
e("v_cndmask_b32 v16, v16, v12, vcc")
e("v_cndmask_b32 v18, v18, v13, vcc")
e(f"s_mov_b32 s{S_T2}, {COPY}")
e(f"buffer_store_dwordx4 v[16:19], v28, {WSR}, 0 offen")
e(f"buffer_store_dwordx4 v[16:19], v28, {WSR}, s{S_T2} offen sc1")
stamp(7)
lab("L_b_gather")
e("s_cmp_ge_u32 s2, 28")
e("s_cbranch_scc1 L_b_end")
e(f"s_mul_i32 s{S_T0}, s2, {RST}")
e(f"s_and_b32 s{S_T1}, s{S_BW}, 3")
e(f"s_lshl_b32 s{S_T1}, s{S_T1}, 12")
e(f"s_add_u32 s{S_T0}, s{S_T0}, s{S_T1}")
e(f"s_lshr_b32 s{S_T1}, s{S_BW}, 2")
e(f"s_mul_i32 s{S_T1}, s{S_T1}, {FBB-FAB}")
e(f"s_add_u32 s{S_T0}, s{S_T0}, s{S_T1}")
e(f"s_add_u32 s{S_T0}, s{S_T0}, {FAB}")
e(f"v_lshl_add_u32 v20, v1, 4, s{S_T0}")
GN = 32
gl = [(None, f"buffer_load_dwordx4 v[{GN+4*n}:{GN+4*n+3}], v20, {WSR}, 0 offen offset:{n*1024} sc1", GN + 4 * n + 1, GN + 4 * n + 3) for n in range(4)]
e(f"s_cmp_eq_u32 s{S_BW}, 7")
e("s_cbranch_scc1 L_b_g7")
ipoll("L_b_g", gl, sleep=FSLEEP)
e("s_branch L_b_gsum")
lab("L_b_g7")
ipoll("L_b_g2", gl[:2], sleep=FSLEEP)
for r in range(GN + 8, GN + 16):
    e(f"v_mov_b32 v{r}, 0")
lab("L_b_gsum")
for n in range(4):
    e(f"v_lshlrev_b32 v{GN+4*n+1}, 16, v{GN+4*n}")
    e(f"v_lshlrev_b32 v{GN+4*n+3}, 16, v{GN+4*n+2}")
    e(f"v_and_b32 v{GN+4*n}, 0xffff0000, v{GN+4*n}")
    e(f"v_and_b32 v{GN+4*n+2}, 0xffff0000, v{GN+4*n+2}")
src = [1, 0, 3, 2]
for j in range(4):
    e(f"v_add_f32 v{12+j}, v{GN+src[j]}, v{GN+4+src[j]}")
    e(f"v_add_f32 v{16+j}, v{GN+8+src[j]}, v{GN+12+src[j]}")
for j in range(4):
    e(f"v_add_f32 v{12+j}, v{12+j}, v{16+j}")
G4 = [12, 13, 14, 15]
e("s_nop 0")
dpp_red("v_add_f32", G4, "row_ror:4")
dpp_red("v_add_f32", G4, "row_ror:8")
swap_red("v_add_f32", G4, [16, 17, 18, 19], 16)
swap_red("v_add_f32", G4, [16, 17, 18, 19], 32)
e(f"v_and_b32 v20, 3, v1")
e(f"s_lshl_b32 s{S_T1}, s{S_BW}, 6")
e(f"v_lshl_add_u32 v20, v20, 4, s{S_T1}")
e(f"ds_write_b128 v20, v[12:15] offset:{L_GS}")
e(f"ds_write_b64 v21, v[24:25] offset:{L_FG}")
lab("L_b_end")
stamp(8)
dump_stamps(9, 2, 3)
e("s_endpgm")

lab("L_ctrlA")
c("================= control A =================")
e("s_setprio 3")
srd(R0, sX, 896)
srd(R1, sWQ, 448 * 8192)
srd(R3, sWO, 4096 * 896)
srd(R4, sOUT, 896)
srd(R5, sB2, 896)
e("v_lshlrev_b32 v2, 4, v1")
e(f"buffer_load_dwordx4 v[4:7], v2, s[{R0}:{R0+3}], 0 offen")
e("v_lshrrev_b32 v3, 2, v1")
e("v_lshlrev_b32 v8, 14, v3")
e("v_and_b32 v9, 3, v1")
e("v_lshl_add_u32 v8, v9, 4, v8")
e(f"s_lshl_b32 s{S_T0}, s{S_H}, 10")
e(f"s_lshr_b32 s{S_T1}, s{S_S}, 1")
e(f"s_lshl_b32 s{S_T1}, s{S_T1}, 6")
e(f"s_add_u32 s{S_T0}, s{S_T0}, s{S_T1}")
e(f"s_and_b32 s{S_T1}, s{S_S}, 1")
e(f"s_mul_i32 s{S_T1}, s{S_T1}, {224*8192}")
e(f"s_add_u32 s{S_T0}, s{S_T0}, s{S_T1}")
e(f"v_add_u32 v8, s{S_T0}, v8")
WQ = 32
for p in range(7):
    for u in range(2):
        idx = 2 * p + u
        st = S_T2 + (idx & 1)
        e(f"s_mov_b32 s{st}, {p*32*8192 + u*8192}")
        e(f"buffer_load_dwordx4 v[{WQ+4*idx}:{WQ+4*idx+3}], v8, s[{R1}:{R1+3}], s{st} offen nt")
e("v_and_b32 v31, 3, v1")
e("v_lshlrev_b32 v31, 6, v31")
e("v_lshrrev_b32 v30, 5, v1")
e("v_lshl_add_u32 v31, v30, 5, v31")
e("v_bfe_u32 v30, v1, 4, 1")
e("v_lshl_add_u32 v31, v30, 4, v31")
e(f"s_lshl_b32 s{S_T0}, s{S_H}, 13")
e(f"s_and_b32 s{S_T1}, s{S_S}, 1")
e(f"s_lshl_b32 s{S_T1}, s{S_T1}, 12")
e(f"s_add_u32 s{S_T0}, s{S_T0}, s{S_T1}")
e(f"s_lshr_b32 s{S_T1}, s{S_S}, 1")
e(f"s_lshl_b32 s{S_T1}, s{S_T1}, 8")
e(f"s_add_u32 s{S_T0}, s{S_T0}, s{S_T1}")
e(f"s_add_u32 s{S_T0}, s{S_T0}, {QB}")
e(f"v_add_u32 v31, s{S_T0}, v31")
NX = 0
if PRER:
    NX = 0
e(f"s_lshl_b32 s{S_T0}, s{S_H}, 5")
e(f"s_add_u32 s{S_T0}, s{S_T0}, s{S_S}")
e(f"s_mul_i32 s{S_T0}, s{S_T0}, {OST}")
e(f"s_add_u32 s{S_T0}, s{S_T0}, {OB}")
e(f"v_add_u32 v29, s{S_T0}, v2")
if PRER:
    e(f"s_mul_i32 s{S_T0}, s2, 1808")
    e(f"s_add_u32 s{S_T0}, s{S_T0}, {FAB}")
    e(f"v_add_u32 v30, s{S_T0}, v2")
    e(f"buffer_load_dwordx4 v[24:27], v30, {WSR}, 0 offen sc1")
    e(f"buffer_load_dwordx4 v[24:27], v30, {WSR}, 0 offen offset:1024 sc1")
e("s_barrier")
if PRER:
    NX = 2
e("v_cmp_gt_u32 vcc, 56, v1")
e("s_nop 1")
e("v_cndmask_b32 v9, 0, 1.0, vcc")
e(f"s_waitcnt vmcnt({14+NX})")
stamp(1)
F = list(range(10, 18))
for k in range(4):
    e(f"v_lshlrev_b32 v{F[2*k]}, 16, v{4+k}")
    e(f"v_and_b32 v{F[2*k+1]}, 0xffff0000, v{4+k}")
layernorm(F, [18, 19, 20, 21], 9)
for k in range(4):
    e(f"v_cvt_pk_bf16_f32 v{4+k}, v{F[2*k]}, v{F[2*k+1]}")
e(f"ds_write_b128 v2, v[4:7] offset:{L_XA}")
e(f"s_and_b32 s{S_T1}, s{S_S}, 1")
e(f"s_mul_i32 s{S_T1}, s{S_T1}, 448")
e(f"v_lshl_add_u32 v3, v3, 2, s{S_T1}")
XP = 88
for p in range(7):
    e(f"ds_read_b32 v{XP+p}, v3 offset:{L_XA+64*p}")
e(f"s_mov_b32 s{S_T2}, 0x05040100")
e(f"s_mov_b32 s{S_T3}, 0x07060302")
AC = 96
for k in range(8):
    e(f"v_mov_b32 v{AC+k+8}, 0")
AC = 104
e("s_waitcnt lgkmcnt(0)")
tags()
stamp(2)
for p in range(7):
    e(f"s_waitcnt vmcnt({12-2*p+NX})")
    a, b = WQ + 8 * p, WQ + 8 * p + 4
    for k in range(4):
        e(f"v_perm_b32 v{112+2*k}, v{b+k}, v{a+k}, s{S_T2}")
        e(f"v_perm_b32 v{113+2*k}, v{b+k}, v{a+k}, s{S_T3}")
    for k in range(8):
        e(f"v_dot2_f32_bf16 v{AC+k}, v{112+k}, v{XP+p}, v{AC+k}")
    e("s_nop 2")
stamp(3)
e("s_nop 2")
for k in range(4):
    e(f"v_permlane32_swap_b32 v{AC+k}, v{AC+k+4}")
for k in range(4):
    e(f"v_add_f32 v{AC+k}, v{AC+k}, v{AC+k+4}")
e("s_nop 1")
for k in range(2):
    e(f"v_permlane16_swap_b32 v{AC+k}, v{AC+k+2}")
for k in range(2):
    e(f"v_add_f32 v{AC+k}, v{AC+k}, v{AC+k+2}")
e("s_nop 1")
dpp_red("v_add_f32", [AC, AC + 1], "row_ror:8")
dpp_red("v_add_f32", [AC, AC + 1], "row_ror:4")
e(f"v_mov_b32 v112, v{AC}")
e(f"v_mov_b32 v113, s{S_TA}")
e(f"v_mov_b32 v114, v{AC+1}")
e(f"v_mov_b32 v115, s{S_TB}")
e("s_mov_b32 exec_lo, 0x000f000f")
e("s_mov_b32 exec_hi, 0x000f000f")
e(f"s_mov_b32 s{S_T2}, {COPY}")
e(f"buffer_store_dwordx4 v[112:115], v31, {WSR}, 0 offen")
e(f"buffer_store_dwordx4 v[112:115], v31, {WSR}, s{S_T2} offen sc1")
e("s_mov_b64 exec, -1")
stamp(4)
e("v_mov_b32 v18, v29")
if not QEARLY:
    e("v_mov_b32 v22, 0")
    lds_spin("L_a_k", 22, L_FK, 20, sleep=2)
stamp(6)
e(f"s_lshl_b32 s{S_T0}, s{S_H}, 13")
e(f"s_add_u32 s{S_T0}, s{S_T0}, {QB}")
e(f"v_add_u32 v19, s{S_T0}, v2")
e("v_add_u32 v20, 4096, v19")
QG = 96
ipoll("L_a_q",
      [(None, f"buffer_load_dwordx4 v[{QG+4*n}:{QG+4*n+3}], v19, {WSR}, s{S_CP} offen offset:{n*1024} sc1", QG + 4 * n + 1, QG + 4 * n + 3) for n in range(4)] +
      [(None, f"buffer_load_dwordx4 v[{QG+16+4*n}:{QG+16+4*n+3}], v20, {WSR}, s{S_CP} offen offset:{n*1024} sc1", QG + 16 + 4 * n + 1, QG + 16 + 4 * n + 3) for n in range(4)],
      dual=True)
for n in range(4):
    e(f"v_add_f32 v{QG+4*n}, v{QG+4*n}, v{QG+16+4*n}")
    e(f"v_add_f32 v{QG+4*n+2}, v{QG+4*n+2}, v{QG+16+4*n+2}")
for n in range(4):
    e(f"v_cvt_pk_bf16_f32 v{QG+4*n}, v{QG+4*n}, v{QG+4*n+2}")
e("v_lshlrev_b32 v19, 2, v1")
e(f"v_mov_b32 v20, s{S_TA}")
e(f"v_mov_b32 v21, s{S_TB}")
e("v_mov_b32 v22, 0")
for n in range(4):
    e(f"ds_write_b32 v19, v{QG+4*n} offset:{L_Q+256*n}")
e(f"ds_write_b64 v22, v[20:21] offset:{L_FQ}")
stamp(5)
e("v_and_b32 v23, 15, v1")
e("v_lshrrev_b32 v24, 4, v1")
e(f"s_movk_i32 s{S_T2}, 896")
e(f"v_mul_lo_u32 v25, v24, s{S_T2}")
e("v_lshl_add_u32 v25, v23, 4, v25")
e(f"s_lshl_b32 s{S_T0}, s{S_H}, 5")
e(f"s_add_u32 s{S_T0}, s{S_T0}, s{S_S}")
e(f"s_mul_i32 s{S_T0}, s{S_T0}, {16*896}")
e(f"v_add_u32 v25, s{S_T0}, v25")
WO = 32
if LATEW:
    lds_spin("L_a_i", 22, L_FI, 20, sleep=2)
for t in range(4):
    st = S_T2 + (t & 1)
    e(f"s_mov_b32 s{st}, {t*4*896}")
    for blk in range(4):
        idx = 4 * t + blk
        e(f"buffer_load_dwordx4 v[{WO+4*idx}:{WO+4*idx+3}], v25, s[{R3}:{R3+3}], s{st} offen offset:{blk*256} nt")
e(f"s_lshl_b32 s{S_T0}, s2, 5")
e("v_and_b32 v26, 7, v1")
e(f"v_lshl_add_u32 v26, v26, 2, s{S_T0}")
e(f"buffer_load_dword v27, v26, s[{R0}:{R0+3}], 0 offen")
e(f"buffer_load_dword v28, v26, s[{R5}:{R5+3}], 0 offen")
vM = [10, 11, 12, 13]
sel_masks(vM, 1, 14, 15, True)
e("v_lshrrev_b32 v30, 1, v24")
e("v_cmp_eq_u32 vcc, 1, v30")
for t in range(4):
    e(f"v_mov_b32 v{14+t}, {4*t}")
    e(f"v_mov_b32 v31, {4*(7-t)}")
    e(f"v_cndmask_b32 v{14+t}, v{14+t}, v31, vcc")
e("v_and_b32 v29, 1, v24")
e("v_cmp_eq_u32 vcc, 1, v29")
e("v_mov_b32 v29, 0x01000100")
e("v_mov_b32 v31, 0x03020302")
e("v_cndmask_b32 v29, v29, v31, vcc")
pub_addr(FAB, 30, 31)
e("v_and_b32 v20, 7, v1")
e("v_lshlrev_b32 v20, 3, v20")
e("s_waitcnt vmcnt(0)")
lds_spin("L_a_w", 20, L_FW, 22, sleep=2)
VN = 96
ipoll("L_a_o",
      [(None, f"buffer_load_dwordx4 v[{VN+4*n}:{VN+4*n+3}], v18, {WSR}, s{S_CP} offen offset:{n*1024} sc1", VN + 4 * n + 1, VN + 4 * n + 3) for n in range(4)],
      sleep=S2SLEEP, dual=True)
stamp(7)
for n in range(4):
    e(f"v_mov_b32 v{VN+4*n+1}, v{VN+4*n}")
    e(f"v_mov_b32 v{VN+4*n+3}, v{VN+4*n+2}")
for n in range(4):
    e(f"v_mov_b32_dpp v{VN+4*n+1}, v{VN+4*n} row_half_mirror row_mask:0xf bank_mask:0x5")
    e(f"v_mov_b32_dpp v{VN+4*n+3}, v{VN+4*n+2} row_half_mirror row_mask:0xf bank_mask:0x5")
e(f"v_max3_f32 v20, v{VN+1}, v{VN+5}, v{VN+9}")
e(f"v_max_f32 v20, v{VN+13}, v20")
for n in range(4):
    e(f"v_lshlrev_b32 v{112+4*n}, 16, v{VN+4*n}")
    e(f"v_and_b32 v{113+4*n}, 0xffff0000, v{VN+4*n}")
    e(f"v_lshlrev_b32 v{114+4*n}, 16, v{VN+4*n+2}")
    e(f"v_and_b32 v{115+4*n}, 0xffff0000, v{VN+4*n+2}")
dpp_red("v_max_f32", [20], "row_ror:8")
swap_red("v_max_f32", [20], [21], 16)
swap_red("v_max_f32", [20], [21], 32)
for n in range(4):
    e(f"v_sub_f32 v{VN+4*n+1}, v{VN+4*n+1}, v20")
for n in range(4):
    e(f"v_mul_f32 v{VN+4*n+1}, s{S_C}, v{VN+4*n+1}")
for n in range(4):
    e(f"v_exp_f32 v{VN+4*n+1}, v{VN+4*n+1}")
e("s_nop 0")
e(f"v_mul_f32 v20, v{VN+1}, v{VN+3}")
for j in range(4):
    e(f"v_mul_f32 v{21+j}, v{VN+1}, v{112+j}")
for n in range(1, 4):
    e(f"v_fmac_f32 v20, v{VN+4*n+1}, v{VN+4*n+3}")
    for j in range(4):
        e(f"v_fmac_f32 v{21+j}, v{VN+4*n+1}, v{112+4*n+j}")
R5v = [20, 21, 22, 23, 24]
dpp_red("v_add_f32", R5v, "row_ror:8")
swap_red("v_add_f32", R5v, [112, 113, 114, 115, 116], 16)
swap_red("v_add_f32", R5v, [112, 113, 114, 115, 116], 32)
e("v_rcp_f32 v20, v20")
e("s_nop 0")
for j in range(4):
    e(f"v_mul_f32 v{21+j}, v{21+j}, v20")
e("v_cvt_pk_bf16_f32 v21, v21, v22")
e("v_cvt_pk_bf16_f32 v23, v23, v24")
e("s_nop 1")
e("v_mov_b32_dpp v21, v23 row_half_mirror row_mask:0xf bank_mask:0xa")
e("s_nop 0")
for t in range(4):
    e(f"ds_bpermute_b32 v{VN+t}, v{14+t}, v21")
e("s_waitcnt lgkmcnt(0)")
for t in range(4):
    e(f"v_perm_b32 v{VN+t}, v{VN+t}, v{VN+t}, v29")
AR2 = 100
for t in range(4):
    for r in range(4):
        e(f"v_and_b32 v{AR2+4*t+r}, v{VN+t}, v{vM[r]}")
e("s_nop 1")
DAr = [116, 120, 124, 4]
for t in range(4):
    for blk in range(4):
        idx = 4 * t + blk
        dd = DAr[blk]
        cc = "0" if t == 0 else f"v[{dd}:{dd+3}]"
        e(f"v_mfma_f32_16x16x32_bf16 v[{dd}:{dd+3}], v[{AR2+4*t}:{AR2+4*t+3}], v[{WO+4*idx}:{WO+4*idx+3}], {cc}")
e("s_nop 7")
publish_D(DAr, 30, 96)
stamp(8)
e("s_cmp_ge_u32 s2, 28")
e("s_cbranch_scc1 L_a_end")
e("v_and_b32 v20, 7, v1")
e("v_lshlrev_b32 v20, 3, v20")
lds_spin("L_a_g", 20, L_FG, 22, sleep=0)
stamp(9)
for w in range(8):
    e(f"ds_read_b64 v[{32+2*w}:{33+2*w}], v20 offset:{L_GS+64*w}")
e("v_lshlrev_b32 v22, 16, v27")
e("v_and_b32 v23, 0xffff0000, v27")
e("v_lshlrev_b32 v24, 16, v28")
e("v_and_b32 v25, 0xffff0000, v28")
e("s_waitcnt lgkmcnt(0)")
for h2 in range(2):
    d = 20 if h2 == 0 else 18
    b0 = 32 + 8 * h2
    for j in range(2):
        e(f"v_add_f32 v{d+j}, v{b0+j}, v{b0+2+j}")
        e(f"v_add_f32 v{b0+4+j}, v{b0+4+j}, v{b0+6+j}")
    for j in range(2):
        e(f"v_add_f32 v{d+j}, v{d+j}, v{b0+4+j}")
for j in range(2):
    bf16r(20 + j, 20 + j)
    bf16r(18 + j, 18 + j)
for j in range(2):
    e(f"v_add_f32 v{20+j}, v{20+j}, v{22+j}")
    e(f"v_add_f32 v{18+j}, v{18+j}, v{24+j}")
for j in range(2):
    bf16r(20 + j, 20 + j)
    bf16r(18 + j, 18 + j)
for j in range(2):
    e(f"v_add_f32 v{20+j}, v{20+j}, v{18+j}")
e("v_cvt_pk_bf16_f32 v20, v20, v21")
e("s_mov_b32 exec_lo, 0xff")
e("s_mov_b32 exec_hi, 0")
e(f"buffer_store_dword v20, v26, s[{R4}:{R4+3}], 0 offen")
e("s_cmp_lg_u32 s2, 0")
e("s_cbranch_scc1 L_a_end")
e("s_mov_b32 exec_lo, 1")
e(f"v_mov_b32 v21, s{S_TA}")
e("v_mov_b32 v22, 0")
e(f"buffer_store_dword v21, v22, {WSR}, 0 offen sc1")
lab("L_a_end")
stamp(10)
dump_stamps(11, 2, 3)
e("s_endpgm")

W2L = 'W2 = 32\ne(f"s_movk_i32 s{S_T3}, 3584")\nfor t in range(2):\n    for blk in range(4):\n        idx = 4 * t + blk\n        so = "0" if t == 0 else f"s{S_T3}"\n        e(f"buffer_load_dwordx4 v[{W2+4*idx}:{W2+4*idx+3}], v25, s[{R3}:{R3+3}], {so} offen offset:{blk*256} nt")\n'
lab("L_ctrlB")
c("================= control B =================")
S_J = 43
if SPARE < 0:
    e("s_cmp_ge_u32 s2, 224")
    e("s_cbranch_scc1 L_end")
    e(f"s_mov_b32 s{S_J}, s2")
else:
    e(f"s_cmp_eq_u32 s{S_H}, {SPARE}")
    e("s_cbranch_scc1 L_end")
    e(f"s_cmp_gt_u32 s{S_H}, {SPARE}")
    e(f"s_cselect_b32 s{S_T0}, 1, 0")
    e(f"s_sub_u32 s{S_T0}, s{S_H}, s{S_T0}")
    e(f"s_lshl_b32 s{S_J}, s{S_T0}, 5")
    e(f"s_add_u32 s{S_J}, s{S_J}, s{S_S}")
    e(f"s_and_b32 s{S_H}, s{S_J}, 7")
    e(f"s_lshr_b32 s{S_S}, s{S_J}, 3")
e("s_setprio 2")
srd(R0, sX, 896)
srd(R1, sW1, 448 * 3584)
srd(R3, sW2, 1792 * 896)
srd(R4, sB1, 3584)
e("v_lshlrev_b32 v2, 4, v1")
e(f"buffer_load_dwordx4 v[4:7], v2, s[{R0}:{R0+3}], 0 offen")
e("v_lshrrev_b32 v3, 3, v1")
e(f"s_movk_i32 s{S_T2}, 3584")
e(f"v_mul_lo_u32 v8, v3, s{S_T2}")
e("v_and_b32 v9, 7, v1")
e("v_lshl_add_u32 v8, v9, 4, v8")
e(f"s_mul_i32 s{S_T0}, s{S_H}, {56*3584}")
e(f"s_lshl_b32 s{S_T1}, s{S_S}, 7")
e(f"s_add_u32 s{S_T0}, s{S_T0}, s{S_T1}")
e(f"v_add_u32 v8, s{S_T0}, v8")
W1 = 32
NXB = 0
for t in range(7):
    st = S_T2 + (t & 1)
    e(f"s_mov_b32 s{st}, {t*8*3584}")
    e(f"buffer_load_dwordx4 v[{W1+4*t}:{W1+4*t+3}], v8, s[{R1}:{R1+3}], s{st} offen nt")
e("v_and_b32 v31, 7, v1")
e("v_lshlrev_b32 v31, 6, v31")
e("v_lshrrev_b32 v30, 5, v1")
e("v_lshl_add_u32 v31, v30, 5, v31")
e("v_bfe_u32 v30, v1, 4, 1")
e("v_lshl_add_u32 v31, v30, 4, v31")
e(f"s_lshl_b32 s{S_T0}, s{S_J}, 9")
e(f"s_add_u32 s{S_T0}, s{S_T0}, {HB}")
e(f"v_add_u32 v31, s{S_T0}, v31")
e("s_barrier")
e("v_cmp_gt_u32 vcc, 56, v1")
e("s_nop 1")
e("v_cndmask_b32 v9, 0, 1.0, vcc")
e(f"s_waitcnt vmcnt({7+NXB})")
stamp(1)
F = list(range(10, 18))
for k in range(4):
    e(f"v_lshlrev_b32 v{F[2*k]}, 16, v{4+k}")
    e(f"v_and_b32 v{F[2*k+1]}, 0xffff0000, v{4+k}")
layernorm(F, [18, 19, 20, 21], 9)
layernorm(F, [18, 19, 20, 21], 9)
e("v_lshlrev_b32 v18, 5, v1")
e(f"ds_write_b128 v18, v[10:13] offset:{L_YB}")
e(f"ds_write_b128 v18, v[14:17] offset:{L_YB+16}")
e(f"s_mul_i32 s{S_T0}, s{S_H}, {56*4}")
e(f"v_lshl_add_u32 v18, v3, 2, s{S_T0}")
YP = 88
for t in range(7):
    e(f"ds_read_b32 v{YP+t}, v18 offset:{L_YB+32*t}")
AC = 104
for k in range(8):
    e(f"v_mov_b32 v{AC+k}, 0")
e("s_waitcnt lgkmcnt(0)")
tags()
for t in range(7):
    e(f"s_waitcnt vmcnt({6-t+NXB})")
    for k in range(4):
        e(f"v_lshlrev_b32 v{112+2*k}, 16, v{W1+4*t+k}")
        e(f"v_and_b32 v{113+2*k}, 0xffff0000, v{W1+4*t+k}")
    for k in range(8):
        e(f"v_fmac_f32 v{AC+k}, v{112+k}, v{YP+t}")
e("s_nop 1")
for k in range(4):
    e(f"v_permlane32_swap_b32 v{AC+k}, v{AC+k+4}")
for k in range(4):
    e(f"v_add_f32 v{AC+k}, v{AC+k}, v{AC+k+4}")
e("s_nop 1")
for k in range(2):
    e(f"v_permlane16_swap_b32 v{AC+k}, v{AC+k+2}")
for k in range(2):
    e(f"v_add_f32 v{AC+k}, v{AC+k}, v{AC+k+2}")
e("s_nop 1")
dpp_red("v_add_f32", [AC, AC + 1], "row_ror:8")
e(f"v_mov_b32 v112, v{AC}")
e(f"v_mov_b32 v113, s{S_TA}")
e(f"v_mov_b32 v114, v{AC+1}")
e(f"v_mov_b32 v115, s{S_TB}")
e("s_mov_b32 exec_lo, 0x00ff00ff")
e("s_mov_b32 exec_hi, 0x00ff00ff")
e(f"s_mov_b32 s{S_T2}, {COPY}")
e(f"buffer_store_dwordx4 v[112:115], v31, {WSR}, 0 offen")
e(f"buffer_store_dwordx4 v[112:115], v31, {WSR}, s{S_T2} offen sc1")
e("s_mov_b64 exec, -1")
stamp(2)
e("v_and_b32 v23, 15, v1")
e("v_lshrrev_b32 v24, 4, v1")
e(f"s_movk_i32 s{S_T2}, 896")
e(f"v_mul_lo_u32 v25, v24, s{S_T2}")
e("v_lshl_add_u32 v25, v23, 4, v25")
e(f"s_mul_i32 s{S_T0}, s{S_J}, {8*896}")
e(f"v_add_u32 v25, s{S_T0}, v25")
W2 = 32
if not LATEW:
    exec(W2L)
e("v_bfe_u32 v26, v1, 3, 2")
e("v_lshlrev_b32 v26, 2, v26")
e(f"s_lshl_b32 s{S_T0}, s{S_J}, 4")
e(f"v_add_u32 v26, s{S_T0}, v26")
e(f"buffer_load_dword v27, v26, s[{R4}:{R4+3}], 0 offen")
vM = [10, 11, 12, 13]
sel_masks(vM, 1, 14, 15, True)
e("v_lshrrev_b32 v14, 1, v24")
e("v_lshlrev_b32 v14, 5, v14")
e("v_add_u32 v15, 64, v14")
e("v_and_b32 v29, 1, v24")
e("v_cmp_eq_u32 vcc, 1, v29")
e("v_mov_b32 v29, 0x01000100")
e("v_mov_b32 v28, 0x03020302")
e("v_cndmask_b32 v29, v29, v28, vcc")
pub_addr(FBB, 30, 31, f"s{S_J}")
e("v_and_b32 v18, 7, v1")
e("v_lshlrev_b32 v18, 9, v18")
e("v_bfe_u32 v19, v1, 3, 2")
e("v_lshl_add_u32 v18, v19, 4, v18")
e(f"s_lshl_b32 s{S_T0}, s{S_S}, 12")
e(f"s_lshl_b32 s{S_T1}, s{S_H}, 6")
e(f"s_add_u32 s{S_T0}, s{S_T0}, s{S_T1}")
e(f"s_add_u32 s{S_T0}, s{S_T0}, {HB}")
e(f"v_add_u32 v18, s{S_T0}, v18")
e("v_mov_b32 v22, 0")
lds_spin("L_m_k", 22, L_FK, 20, sleep=4)
ipoll("L_m_h", [(None, f"buffer_load_dwordx4 v[96:99], v18, {WSR}, s{S_CP} offen sc1", 97, 99)], dual=True)
stamp(3)
if LATEW:
    e("v_mov_b32 v22, 0")
    lds_spin("L_m_i", 22, L_FI, 20, sleep=4)
    exec(W2L)
e("v_mov_b32 v20, v96")
e("v_mov_b32 v21, v98")
e("s_nop 1")
dpp_red("v_add_f32", [20, 21], "quad_perm:[1,0,3,2]")
dpp_red("v_add_f32", [20, 21], "quad_perm:[2,3,0,1]")
dpp_red("v_add_f32", [20, 21], "row_half_mirror")
bf16r(20, 20)
bf16r(21, 21)
e("v_lshlrev_b32 v22, 16, v27")
e("v_and_b32 v23, 0xffff0000, v27")
e("v_add_f32 v20, v20, v22")
e("v_add_f32 v21, v21, v23")
bf16r(20, 20)
bf16r(21, 21)
K0 = 0.7978845608028654
K1 = 0.044715
e(f"s_mov_b32 s{S_T0}, 0x{f32hex(K1)}")
e(f"s_mov_b32 s{S_T1}, 0x{f32hex(-2.0*K0*LOG2E)}")
for (x, t) in ((20, 22), (21, 23)):
    e(f"v_mul_f32 v{t}, v{x}, v{x}")
    e(f"v_mul_f32 v{t}, v{t}, v{x}")
    e(f"v_fma_f32 v{t}, v{t}, s{S_T0}, v{x}")
    e(f"v_mul_f32 v{t}, s{S_T1}, v{t}")
    e(f"v_exp_f32 v{t}, v{t}")
    e("s_nop 0")
    e(f"v_add_f32 v{t}, 1.0, v{t}")
    e(f"v_rcp_f32 v{t}, v{t}")
    e("s_nop 0")
    e(f"v_mul_f32 v{x}, v{x}, v{t}")
e("v_cvt_pk_bf16_f32 v21, v20, v21")
e("s_nop 0")
e("ds_bpermute_b32 v96, v14, v21")
e("ds_bpermute_b32 v97, v15, v21")
e("s_waitcnt lgkmcnt(0)")
e("v_perm_b32 v96, v96, v96, v29")
e("v_perm_b32 v97, v97, v97, v29")
AR3 = 100
for t in range(2):
    for r in range(4):
        e(f"v_and_b32 v{AR3+4*t+r}, v{96+t}, v{vM[r]}")
e("s_waitcnt vmcnt(0)")
DBr = [112, 116, 120, 124]
for t in range(2):
    for blk in range(4):
        idx = 4 * t + blk
        dd = DBr[blk]
        cc = "0" if t == 0 else f"v[{dd}:{dd+3}]"
        e(f"v_mfma_f32_16x16x32_bf16 v[{dd}:{dd+3}], v[{AR3+4*t}:{AR3+4*t+3}], v[{W2+4*idx}:{W2+4*idx+3}], {cc}")
e("s_nop 7")
publish_D(DBr, 30, 96)
stamp(4)
dump_stamps(5, 2, 3)
lab("L_end")
e("s_endpgm")

out.append('.section .rodata,"a"')
out.append(".p2align 6")
out.append(f".amdhsa_kernel {NAME}_kernel")
out.append("  .amdhsa_next_free_vgpr 128")
out.append("  .amdhsa_next_free_sgpr 102")
out.append("  .amdhsa_accum_offset 128")
out.append("  .amdhsa_group_segment_fixed_size 0")
out.append("  .amdhsa_kernarg_size 104")
out.append("  .amdhsa_user_sgpr_count 2")
out.append("  .amdhsa_user_sgpr_kernarg_segment_ptr 1")
out.append("  .amdhsa_system_sgpr_workgroup_id_x 1")
out.append("  .amdhsa_float_denorm_mode_32 3")
out.append("  .amdhsa_float_denorm_mode_16_64 3")
out.append(".end_amdhsa_kernel")
open(OUTFILE, "w").write("\n".join(out) + "\n")
print("wrote", OUTFILE, len(out), "lines")
```

```python
import struct
import sys

NAME = "parallel_sum__sliding_block_cached__mixer_channel_mlp__decode"
DIAG = False
OPT = {}
for a in sys.argv[1:]:
    if a == "diag":
        DIAG = True
    elif "=" in a:
        k, v = a.split("=")
        OPT[k] = v

THR = int(OPT.get("thr", "6"))
NPRE = int(OPT.get("npre", "2"))
S2SLEEP = int(OPT.get("s2sleep", "1"))
FSLEEP = int(OPT.get("fsleep", "1"))
KFL = int(OPT.get("kfl", "11"))
KFLAG = int(OPT.get("kflag", "0"))
PRER = False
WSOFF = int(OPT.get("wsoff", "0")) << 20
SPARE = int(OPT.get("spare", "5"))
LATEW = OPT.get("latew", "1") == "1"
QEARLY = OPT.get("qearly", "0") == "1"
PREW = OPT.get("prew", "0") == "1"
PRE2 = OPT.get("pre2", "1") == "1"
OUTFILE = OPT.get("out", "cdna_kernels/%s.s" % NAME)

QB = 0x10000
HB = 0x20000
OB = 0x40000
OST = 4224
A1B = 0x180000
B1B = 0x200000
F2B = 0x300000
COPY = 0x400000
NFAST = int(OPT.get("nfast", "64"))
NFQ = int(OPT.get("nfq", "8"))
DIAGB = 0x1000000
WS_BYTES = 0x2000000

L_Q = 0x0000
L_XA = 0x0400
L_YB = 0x0800
L_FQ = 0x1000
L_FK = 0x1008
L_FI = 0x1010
L_CO = 0x1018
L_FW = 0x1040
L_FG = 0x1080
L_ST = 0x1100
L_GS = 0x1200
L_O = 0x2000
LDS_BYTES = 0x6000

POLL_MAX = 200000

out = []


def e(s):
    if OPT.get("nos") == "1" and s.startswith("buffer_store") and "s74 offen sc1" in s and "v[16:19]" in s or (OPT.get("nos") == "1" and s.startswith("buffer_store") and "v[112:115]" in s and "sc1" in s):
        return
    out.append("    " + s)


def lab(s):
    out.append(s + ":")


def c(s):
    out.append("    ; " + s)


def f32hex(x):
    return "%08x" % struct.unpack("<I", struct.pack("<f", x))[0]


sX, sK, sV, sWQ, sWO, sW1, sB1, sW2, sB2, sOUT, sWS = 16, 18, 20, 22, 24, 28, 30, 32, 34, 36, 40
S_EP = 42
S_W = 3
R0, R1, RWS, R3, R4, R5 = 44, 48, 52, 56, 60, 64
S_TA, S_TB = 68, 69
S_H, S_S = 70, 71
S_T0, S_T1, S_T2, S_T3 = 72, 73, 74, 75
S_C = 76
S_CNT = 77
S_M0, S_M1 = 78, 79
S_STAMP = 80
S_BW = 43
S_CP = 38
S_CPC = 39
S_XC = 36
S_CO = 37
MASKS = [4, 6, 8, 10, 12, 14, 16, 18, 20, 22, 24, 26, 28, 30, 32, 34]
WSR = f"s[{RWS}:{RWS+3}]"


def srd(r, ptr, nbytes, off_sgpr=None):
    if off_sgpr is None:
        e(f"s_mov_b32 s{r}, s{ptr}")
        e(f"s_mov_b32 s{r+1}, s{ptr+1}")
    else:
        e(f"s_add_u32 s{r}, s{ptr}, s{off_sgpr}")
        e(f"s_addc_u32 s{r+1}, s{ptr+1}, 0")
    e(f"s_mov_b32 s{r+2}, {nbytes}")
    e(f"s_mov_b32 s{r+3}, 0x00020000")


def stamp(idx):
    if not DIAG:
        return
    e("s_memrealtime s[100:101]")
    e("s_waitcnt lgkmcnt(0)")
    e(f"s_mov_b32 s{S_STAMP+idx}, s100")


def dump_stamps(n, vtmp, vtmp2):
    if not DIAG:
        return
    e("s_mov_b64 exec, -1")
    e(f"s_lshl_b32 s{S_T0}, s2, 10")
    e(f"s_lshl_b32 s{S_T1}, s{S_W}, 6")
    e(f"s_add_u32 s{S_T0}, s{S_T0}, s{S_T1}")
    e(f"s_add_u32 s{S_T0}, s{S_T0}, {DIAGB}")
    e(f"v_mov_b32 v{vtmp}, s{S_T0}")
    for i in range(n):
        e(f"v_mov_b32 v{vtmp2}, s{S_STAMP+i}")
        e(f"buffer_store_dword v{vtmp2}, v{vtmp}, {WSR}, 0 offen offset:{4*i}")
        e("s_nop 1")


def tags():
    e(f"s_mul_i32 s{S_TA}, s{S_EP}, 1664525")
    e(f"s_add_u32 s{S_TA}, s{S_TA}, 1013904223")
    e(f"s_xor_b32 s{S_TB}, s{S_EP}, 0x5bd1e995")
    e(f"s_mul_i32 s{S_TB}, s{S_TB}, 0x9E3779B1")
    e(f"s_add_u32 s{S_TB}, s{S_TB}, 0x7F4A7C15")


DPPM = "row_mask:0xf bank_mask:0xf"


def dpp_red(op, regs, ctrl):
    for r in regs:
        e(f"{op}_dpp v{r}, v{r}, v{r} {ctrl} {DPPM}")
    if len(regs) < 3:
        e("s_nop %d" % (2 - len(regs)))


def swap_red(op, regs, tmps, which):
    for r, t in zip(regs, tmps):
        e(f"v_mov_b32 v{t}, v{r}")
    e("s_nop 1")
    for r, t in zip(regs, tmps):
        e(f"v_permlane{which}_swap_b32 v{r}, v{t}")
    for r, t in zip(regs, tmps):
        e(f"{op} v{r}, v{r}, v{t}")
    if len(regs) < 3:
        e("s_nop %d" % (2 - len(regs)))


def wave_red(op, regs, tmps):
    e("s_nop 1")
    dpp_red(op, regs, "quad_perm:[1,0,3,2]")
    dpp_red(op, regs, "quad_perm:[2,3,0,1]")
    dpp_red(op, regs, "row_half_mirror")
    dpp_red(op, regs, "row_mirror")
    swap_red(op, regs, tmps, 16)
    swap_red(op, regs, tmps, 32)


def bf16r(dst, src):
    e(f"v_cvt_pk_bf16_f32 v{dst}, v{src}, v{src}")
    e(f"v_lshlrev_b32 v{dst}, 16, v{dst}")


def layernorm(f, t, vvalid):
    a, b, d, g = t[0], t[1], t[2], t[3]
    e(f"v_add_f32 v{a}, v{f[0]}, v{f[1]}")
    e(f"v_add_f32 v{b}, v{f[2]}, v{f[3]}")
    e(f"v_add_f32 v{d}, v{f[4]}, v{f[5]}")
    e(f"v_add_f32 v{g}, v{f[6]}, v{f[7]}")
    e(f"v_add_f32 v{a}, v{a}, v{b}")
    e(f"v_add_f32 v{d}, v{d}, v{g}")
    e(f"v_add_f32 v{a}, v{a}, v{d}")
    wave_red("v_add_f32", [a], [b])
    e(f"v_mul_f32 v{a}, 0x{f32hex(1.0/448.0)}, v{a}")
    e(f"v_mov_b32 v{d}, 0")
    for i in range(8):
        e(f"v_sub_f32 v{b}, v{f[i]}, v{a}")
        e(f"v_fmac_f32 v{d}, v{b}, v{b}")
    e(f"v_mul_f32 v{d}, v{d}, v{vvalid}")
    wave_red("v_add_f32", [d], [b])
    e(f"v_mul_f32 v{d}, 0x{f32hex(1.0/448.0)}, v{d}")
    bf16r(a, a)
    bf16r(d, d)
    e(f"v_add_f32 v{d}, 0x{f32hex(1e-5)}, v{d}")
    bf16r(d, d)
    e(f"v_sqrt_f32 v{d}, v{d}")
    e("s_nop 0")
    bf16r(d, d)
    e(f"v_rcp_f32 v{d}, v{d}")
    e("s_nop 0")
    for i in range(8):
        e(f"v_sub_f32 v{f[i]}, v{f[i]}, v{a}")
        bf16r(f[i], f[i])
        e(f"v_mul_f32 v{f[i]}, v{f[i]}, v{d}")
        bf16r(f[i], f[i])
        e(f"v_mul_f32 v{f[i]}, v{f[i]}, v{vvalid}")


def ipoll(label, loads, sleep=0, dual=False, xt=None, ign=None):
    assert len(loads) <= len(MASKS)
    if OPT.get("nohand") == "2":
        return
    if OPT.get("nohand") == "1":
        for (pre, ld, va, vb) in loads:
            if pre:
                e(pre)
            e(ld)
        e("s_waitcnt vmcnt(0)")
        return
    e(f"s_mov_b32 s{S_CNT}, 0")
    nf = NFAST
    if dual == "flag":
        e(f"s_cmp_lg_u32 s{S_CO}, 0")
        e(f"s_cselect_b32 s{S_CP}, {COPY}, 0")
    elif dual:
        e(f"s_mov_b32 s{S_CP}, 0")
        nf = NFQ
    for (pre, ld, va, vb) in loads:
        if pre:
            e(pre)
        e(ld)
    e(f"s_branch {label}_chk")
    lab(label)
    if dual:
        e(f"s_cmp_ge_u32 s{S_CNT}, {nf}")
        e(f"s_cselect_b32 s{S_CPC}, {COPY}, 0")
        e(f"s_xor_b32 s{S_CP}, s{S_CP}, s{S_CPC}")
    for i, (pre, ld, va, vb) in enumerate(loads):
        m = MASKS[i]
        e(f"s_cmp_eq_u64 s[{m}:{m+1}], 0")
        e(f"s_cbranch_scc1 {label}_s{i}")
        e(f"s_mov_b64 exec, s[{m}:{m+1}]")
        if pre:
            e(pre)
        e(ld)
        lab(f"{label}_s{i}")
    e("s_mov_b64 exec, -1")
    lab(f"{label}_chk")
    e("s_waitcnt vmcnt(0)")
    for i, (pre, ld, va, vb) in enumerate(loads):
        m = MASKS[i]
        e(f"v_cmp_ne_u32 s[{m}:{m+1}], s{S_TA}, v{va}")
        if xt is None:
            e(f"v_cmp_ne_u32 vcc, s{S_TB}, v{vb}")
        else:
            e(f"v_xor_b32 v{xt}, s{S_TB}, v{vb}")
            e(f"v_cmp_le_u32 vcc, 8, v{xt}")
        e(f"s_or_b64 s[{m}:{m+1}], s[{m}:{m+1}], vcc")
        if ign and ign.get(i):
            e(f"s_and_b32 s{m}, s{m}, 0x{(~ign[i]) & 0xffffffff:x}")
            e(f"s_and_b32 s{m+1}, s{m+1}, 0x{((~ign[i]) >> 32) & 0xffffffff:x}")
        if i == 0:
            e(f"s_mov_b64 s[{S_M0}:{S_M1}], s[{m}:{m+1}]")
        else:
            e(f"s_or_b64 s[{S_M0}:{S_M1}], s[{S_M0}:{S_M1}], s[{m}:{m+1}]")
    e(f"s_cmp_eq_u64 s[{S_M0}:{S_M1}], 0")
    e(f"s_cbranch_scc1 {label}_done")
    if sleep:
        e(f"s_sleep {sleep}")
    e(f"s_add_u32 s{S_CNT}, s{S_CNT}, 1")
    e(f"s_cmp_lt_u32 s{S_CNT}, {POLL_MAX}")
    e(f"s_cbranch_scc1 {label}")
    lab(label + "_done")


def lds_spin(label, vaddr, off, vt, sleep=1):
    e(f"s_mov_b32 s{S_CNT}, 0")
    lab(label)
    e(f"ds_read_b64 v[{vt}:{vt+1}], v{vaddr} offset:{off}")
    e("s_waitcnt lgkmcnt(0)")
    e(f"v_cmp_eq_u32 vcc, s{S_TA}, v{vt}")
    e(f"v_cmp_eq_u32 s[{S_M0}:{S_M1}], s{S_TB}, v{vt+1}")
    e(f"s_and_b64 vcc, vcc, s[{S_M0}:{S_M1}]")
    e("s_cmp_eq_u64 vcc, -1")
    e(f"s_cbranch_scc1 {label}_done")
    if sleep:
        e(f"s_sleep {sleep}")
    e(f"s_add_u32 s{S_CNT}, s{S_CNT}, 1")
    e(f"s_cmp_lt_u32 s{S_CNT}, {POLL_MAX*10}")
    e(f"s_cbranch_scc1 {label}")
    lab(label + "_done")


def sel_masks(vm, vlane, t0, t1, rows8):
    e(f"v_and_b32 v{t0}, 1, v{vlane}")
    e(f"v_lshlrev_b32 v{t0}, 4, v{t0}")
    e(f"v_mov_b32 v{t1}, 0xffff")
    e(f"v_lshlrev_b32 v{t1}, v{t0}, v{t1}")
    if rows8:
        e(f"v_bfe_u32 v{t0}, v{vlane}, 1, 3")
    else:
        e(f"v_bfe_u32 v{t0}, v{vlane}, 1, 2")
    for r in range(4):
        e(f"v_cmp_eq_u32 vcc, {r}, v{t0}")
        e("s_nop 1")
        e(f"v_cndmask_b32 v{vm[r]}, 0, v{t1}, vcc")


def pub_addr(base, va, vt, sh, ss):
    e(f"v_bfe_u32 v{va}, v1, 2, 2")
    e(f"v_lshrrev_b32 v{vt}, 5, v1")
    e(f"v_lshl_add_u32 v{va}, v{vt}, 2, v{va}")
    e(f"v_mul_u32_u24 v{va}, {OST}, v{va}")
    e(f"v_and_b32 v{vt}, 3, v1")
    e(f"v_lshl_add_u32 v{va}, v{vt}, 5, v{va}")
    e(f"v_bfe_u32 v{vt}, v1, 4, 1")
    e(f"v_lshl_add_u32 v{va}, v{vt}, 4, v{va}")
    e(f"s_mul_i32 s{S_T0}, {sh}, {14*OST}")
    e(f"s_lshl_b32 s{S_T1}, {ss}, 7")
    e(f"s_add_u32 s{S_T0}, s{S_T0}, s{S_T1}")
    e(f"s_add_u32 s{S_T0}, s{S_T0}, {base}")
    e(f"v_add_u32 v{va}, s{S_T0}, v{va}")


def publish_D(Dr, va, tb, lbl):
    for p in range(2):
        d0, d1 = Dr[2 * p], Dr[2 * p + 1]
        e(f"v_cvt_pk_bf16_f32 v{tb+4*p}, v{d0}, v{d0+1}")
        e(f"v_cvt_pk_bf16_f32 v{tb+4*p+2}, v{d0+2}, v{d0+3}")
        e(f"v_cvt_pk_bf16_f32 v{d1}, v{d1}, v{d1+1}")
        e(f"v_cvt_pk_bf16_f32 v{d1+2}, v{d1+2}, v{d1+3}")
        e(f"v_mov_b32 v{tb+4*p+1}, s{S_TA}")
        e(f"v_mov_b32 v{tb+4*p+3}, s{S_TB}")
    e(f"s_mov_b32 s{S_T2}, {8*OST}")
    for p in range(2):
        d1 = Dr[2 * p + 1]
        e(f"v_permlane32_swap_b32 v{tb+4*p}, v{d1}")
        e(f"v_permlane32_swap_b32 v{tb+4*p+2}, v{d1+2}")
    e(f"buffer_store_dwordx4 v[{tb}:{tb+3}], v{va}, {WSR}, 0 offen")
    e("s_mov_b32 exec_hi, 0x00ff00ff")
    e(f"buffer_store_dwordx4 v[{tb+4}:{tb+7}], v{va}, {WSR}, s{S_T2} offen")
    e(f"s_cmp_eq_u32 s{S_CO}, 0")
    e(f"s_cbranch_scc1 {lbl}")
    e(f"s_mov_b32 s{S_T2}, {8*OST+COPY}")
    e(f"s_mov_b32 s{S_T3}, {COPY}")
    e(f"buffer_store_dwordx4 v[{tb+4}:{tb+7}], v{va}, {WSR}, s{S_T2} offen sc1")
    e("s_mov_b64 exec, -1")
    e(f"buffer_store_dwordx4 v[{tb}:{tb+3}], v{va}, {WSR}, s{S_T3} offen sc1")
    lab(lbl)
    e("s_mov_b64 exec, -1")


LOG2E = 1.4426950408889634

hdr = open("cdna_kernels/%s.s.ref" % NAME).read().split("\n")
for line in hdr:
    if line.startswith("; @launch"):
        break
    out.append(line)
out.append(f"; @launch grid=(256,1,1) block=(640,1,1) lds={LDS_BYTES}")
out.append('.amdgcn_target "amdgcn-amd-amdhsa--gfx950"')
out.append(".text")
out.append(f".globl {NAME}_kernel")
out.append(".p2align 8")
out.append(f".type {NAME}_kernel,@function")
lab(f"{NAME}_kernel")
e("s_cmp_ge_u32 s2, 256")
e("s_cbranch_scc1 L_end")
stamp(0)
e("s_load_dwordx16 s[16:31], s[0:1], 0")
e("s_load_dwordx8 s[32:39], s[0:1], 64")
e("s_load_dwordx2 s[40:41], s[0:1], 96")
e("v_lshrrev_b32 v1, 6, v0")
e("v_and_b32 v2, 63, v0")
e("s_nop 0")
e(f"v_readfirstlane_b32 s{S_W}, v1")
e("v_mov_b32 v1, v2")
e("v_lshlrev_b32 v2, 2, v2")
e("v_mov_b32 v3, 0")
e(f"ds_write_b32 v2, v3 offset:{L_FQ}")
e(f"s_and_b32 s{S_H}, s2, 7")
e(f"s_lshr_b32 s{S_S}, s2, 3")
e(f"s_mov_b32 s{S_C}, 0x{f32hex(0.0625*LOG2E)}")
e("s_waitcnt lgkmcnt(0)")
if WSOFF:
    e(f"s_add_u32 s{sWS}, s{sWS}, {WSOFF}")
    e(f"s_addc_u32 s{sWS+1}, s{sWS+1}, 0")
e(f"s_load_dword s{S_EP}, s[{sWS}:{sWS+1}], 0")
srd(RWS, sWS, WS_BYTES)
e(f"s_cmp_eq_u32 s{S_W}, 0")
e("s_cbranch_scc1 L_ctrlA")
e(f"s_cmp_eq_u32 s{S_W}, 1")
e("s_cbranch_scc1 L_ctrlB")

c("================= bulk wave =================")
e(f"s_sub_u32 s{S_BW}, s{S_W}, 2")
e(f"s_lshl_b32 s{S_T0}, s{S_H}, 24")
e(f"s_lshl_b32 s{S_T1}, s{S_S}, 16")
e(f"s_add_u32 s{S_T0}, s{S_T0}, s{S_T1}")
e(f"s_add_u32 s{S_T0}, s{S_T0}, {28672*512}")
srd(R0, sK, 65536, S_T0)
srd(R1, sV, 65536, S_T0)
e(f"s_mov_b32 s{S_T3}, 4096")
vI, vG, vKo, vVo = 2, 3, 4, 5
e(f"v_and_b32 v{vI}, 15, v1")
e(f"v_lshrrev_b32 v{vG}, 4, v1")
e(f"s_lshl_b32 s{S_T1}, s{S_BW}, 13")
e(f"v_lshlrev_b32 v{vKo}, 9, v{vI}")
e(f"v_lshl_add_u32 v{vKo}, v{vG}, 4, v{vKo}")
e(f"v_add_u32 v{vKo}, s{S_T1}, v{vKo}")
e(f"v_lshlrev_b32 v{vVo}, 9, v{vG}")
e(f"v_lshl_add_u32 v{vVo}, v{vI}, 4, v{vVo}")
e(f"v_add_u32 v{vVo}, s{S_T1}, v{vVo}")
KR, VR, QR = 32, 64, 96


def kflag():
    e("s_waitcnt lgkmcnt(0)")
    tags()
    e(f"s_cmp_lg_u32 s{S_BW}, {KFLAG}")
    e("s_cbranch_scc1 L_b_nok")
    e(f"v_mov_b32 v6, s{S_TA}")
    e(f"v_mov_b32 v7, s{S_TB}")
    e("v_mov_b32 v8, 0")
    e(f"ds_write_b64 v8, v[6:7] offset:{L_FK}")
    lab("L_b_nok")


for kk in range(8):
    if kk == NPRE:
        e("s_barrier")
    e(f"buffer_load_dwordx4 v[{KR+4*kk}:{KR+4*kk+3}], v{vKo}, s[{R0}:{R0+3}], 0 offen offset:{kk*64} nt")
    if kk + 1 >= THR:
        e(f"s_waitcnt vmcnt({THR-1})")
    if kk == KFL:
        kflag()
for t in range(4):
    for half in range(2):
        so = "0" if t < 2 else f"s{S_T3}"
        idx = 2 * t + half
        e(f"buffer_load_dwordx4 v[{VR+4*idx}:{VR+4*idx+3}], v{vVo}, s[{R1}:{R1+3}], {so} offen offset:{(t&1)*2048+half*256} nt")
        if idx < 7:
            e(f"s_waitcnt vmcnt({THR-1})")
        if 8 + idx == KFL:
            kflag()
e(f"s_cmp_lg_u32 s{S_BW}, 7")
e("s_cbranch_scc1 L_b_noi")
e(f"v_mov_b32 v6, s{S_TA}")
e(f"v_mov_b32 v7, s{S_TB}")
e("v_mov_b32 v8, 0")
e(f"ds_write_b64 v8, v[6:7] offset:{L_FI}")
lab("L_b_noi")
stamp(1)
vM = [6, 7, 8, 9]
sel_masks(vM, 1, 10, 11, False)
vQa, vZ = 10, 11
e(f"v_lshrrev_b32 v{vQa}, 3, v{vI}")
e(f"v_lshlrev_b32 v{vQa}, 9, v{vQa}")
e(f"v_lshl_add_u32 v{vQa}, v{vG}, 4, v{vQa}")
e(f"v_mov_b32 v{vZ}, 0")
lds_spin("L_b_q", vZ, L_FQ, 12)
stamp(2)
e(f"ds_read_b32 v12, v{vZ} offset:{L_CO}")
for kk in range(8):
    e(f"ds_read_b128 v[{QR+4*kk}:{QR+4*kk+3}], v{vQa} offset:{L_Q+kk*64}")
e("s_waitcnt vmcnt(8) lgkmcnt(0)")
e(f"v_readfirstlane_b32 s{S_CO}, v12")
stamp(3)
D = 12
for kk in range(8):
    cc = "0" if kk == 0 else f"v[{D}:{D+3}]"
    e(f"v_mfma_f32_16x16x32_bf16 v[{D}:{D+3}], v[{KR+4*kk}:{KR+4*kk+3}], v[{QR+4*kk}:{QR+4*kk+3}], {cc}")
e("s_nop 7")
P = [16, 17, 18, 19]
e(f"v_cvt_pk_bf16_f32 v20, v{D}, v{D+1}")
e(f"v_cvt_pk_bf16_f32 v21, v{D+2}, v{D+3}")
e(f"v_lshlrev_b32 v{P[0]}, 16, v20")
e(f"v_and_b32 v{P[1]}, 0xffff0000, v20")
e(f"v_lshlrev_b32 v{P[2]}, 16, v21")
e(f"v_and_b32 v{P[3]}, 0xffff0000, v21")
vMx, vL = 22, 23
e(f"v_max_f32 v{vMx}, v{P[0]}, v{P[1]}")
e(f"v_max3_f32 v{vMx}, v{P[2]}, v{P[3]}, v{vMx}")
swap_red("v_max_f32", [vMx], [20], 16)
swap_red("v_max_f32", [vMx], [20], 32)
for r in range(4):
    e(f"v_sub_f32 v{P[r]}, v{P[r]}, v{vMx}")
for r in range(4):
    e(f"v_mul_f32 v{P[r]}, s{S_C}, v{P[r]}")
for r in range(4):
    e(f"v_exp_f32 v{P[r]}, v{P[r]}")
e("s_nop 0")
e(f"v_add_f32 v{vL}, v{P[0]}, v{P[1]}")
e(f"v_add_f32 v20, v{P[2]}, v{P[3]}")
e(f"v_add_f32 v{vL}, v{vL}, v20")
for r in range(4):
    e(f"v_cvt_pk_bf16_f32 v{P[r]}, v{P[r]}, v{P[r]}")
swap_red("v_add_f32", [vL], [20], 16)
swap_red("v_add_f32", [vL], [20], 32)
e(f"v_permlane32_swap_b32 v{P[0]}, v{P[2]}")
e(f"v_permlane32_swap_b32 v{P[1]}, v{P[3]}")
e("s_nop 1")
e(f"v_permlane16_swap_b32 v{P[0]}, v{P[1]}")
e(f"v_permlane16_swap_b32 v{P[2]}, v{P[3]}")
AR = 96
for t in range(4):
    for r in range(4):
        e(f"v_and_b32 v{AR+4*t+r}, v{P[t]}, v{vM[r]}")
e(f"v_lshrrev_b32 v20, 3, v{vI}")
e(f"v_lshlrev_b32 v20, 3, v20")
e(f"s_lshl_b32 s{S_T1}, s{S_BW}, 4")
e(f"v_add_u32 v20, s{S_T1}, v20")
e(f"ds_write_b64 v20, v[{vMx}:{vL}] offset:{L_ST}")
e(f"v_lshrrev_b32 v20, 5, v1")
e(f"v_lshlrev_b32 v20, 10, v20")
e(f"v_lshl_add_u32 v20, v{vI}, 5, v20")
e(f"v_and_b32 v21, 1, v{vG}")
e(f"v_lshl_add_u32 v20, v21, 4, v20")
e(f"s_lshl_b32 s{S_T1}, s{S_BW}, 11")
e(f"v_add_u32 v20, s{S_T1}, v20")
e(f"v_mov_b32 v24, s{S_TA}")
e(f"v_mov_b32 v25, s{S_TB}")
e(f"s_lshl_b32 s{S_T1}, s{S_BW}, 3")
e(f"v_mov_b32 v21, s{S_T1}")
e(f"v_and_b32 v26, 7, v1")
e(f"v_lshlrev_b32 v26, 3, v26")
e(f"s_lshr_b32 s{S_T1}, s{S_BW}, 1")
e(f"s_lshl_b32 s{S_T1}, s{S_T1}, 3")
e(f"v_mov_b32 v27, s{S_T1}")
e(f"v_lshrrev_b32 v28, 3, v1")
e(f"v_and_b32 v29, 3, v1")
e(f"v_lshlrev_b32 v30, 6, v28")
e(f"v_lshl_add_u32 v30, v29, 4, v30")
e(f"s_lshl_b32 s{S_T1}, s{S_BW}, 9")
e(f"v_add_u32 v30, s{S_T1}, v30")
e(f"s_lshl_b32 s{S_T0}, s{S_H}, 5")
e(f"s_lshl_b32 s{S_T1}, s{S_BW}, 3")
e(f"s_add_u32 s{S_T0}, s{S_T0}, s{S_T1}")
e(f"s_mul_i32 s{S_T0}, s{S_T0}, {OST}")
e(f"s_lshl_b32 s{S_T1}, s{S_S}, 7")
e(f"s_add_u32 s{S_T0}, s{S_T0}, s{S_T1}")
e(f"s_add_u32 s{S_T0}, s{S_T0}, {OB}")
e(f"v_mul_u32_u24 v28, {OST}, v28")
e(f"v_and_b32 v29, 7, v1")
e(f"v_lshl_add_u32 v28, v29, 4, v28")
e(f"v_add_u32 v28, s{S_T0}, v28")
stamp(4)
DL, DH = 112, 116
for t in range(4):
    for half in range(2):
        idx = 2 * t + half
        e(f"s_waitcnt vmcnt({7-idx})")
        dd = DL if half == 0 else DH
        cc = "0" if t == 0 else f"v[{dd}:{dd+3}]"
        e(f"v_mfma_f32_16x16x32_bf16 v[{dd}:{dd+3}], v[{AR+4*t}:{AR+4*t+3}], v[{VR+4*idx}:{VR+4*idx+3}], {cc}")
stamp(5)
e("s_nop 6")
e(f"ds_write_b128 v20, v[{DL}:{DL+3}] offset:{L_O}")
e("s_nop 0")
e(f"ds_write_b128 v20, v[{DH}:{DH+3}] offset:{L_O+512}")
e(f"ds_write_b64 v21, v[24:25] offset:{L_FW}")
e(f"s_cmp_ge_u32 s{S_BW}, 4")
e("s_cbranch_scc1 L_b_gather")
lds_spin("L_b_w", 26, L_FW, 22, sleep=0)
stamp(6)
ST, OV = 32, 48
for w in range(8):
    e(f"ds_read_b64 v[{ST+2*w}:{ST+2*w+1}], v27 offset:{L_ST+16*w}")
for w in range(8):
    e(f"ds_read_b128 v[{OV+4*w}:{OV+4*w+3}], v30 offset:{L_O+2048*w}")
e("s_waitcnt lgkmcnt(8)")
e(f"v_max3_f32 v12, v{ST}, v{ST+2}, v{ST+4}")
e(f"v_max3_f32 v12, v{ST+6}, v{ST+8}, v12")
e(f"v_max3_f32 v12, v{ST+10}, v{ST+12}, v12")
e(f"v_max_f32 v12, v{ST+14}, v12")
for w in range(8):
    e(f"v_sub_f32 v{ST+2*w}, v{ST+2*w}, v12")
for w in range(8):
    e(f"v_mul_f32 v{ST+2*w}, s{S_C}, v{ST+2*w}")
for w in range(8):
    e(f"v_exp_f32 v{ST+2*w}, v{ST+2*w}")
e("v_cmp_lt_u32 vcc, 3, v29")
e(f"v_mul_f32 v13, v{ST}, v{ST+1}")
for w in range(1, 8):
    e(f"v_fmac_f32 v13, v{ST+2*w}, v{ST+2*w+1}")
e("s_waitcnt lgkmcnt(0)")
for j in range(4):
    e(f"v_mul_f32 v{16+j}, v{ST}, v{OV+j}")
for w in range(1, 8):
    for j in range(4):
        e(f"v_fmac_f32 v{16+j}, v{ST+2*w}, v{OV+4*w+j}")
e("v_cvt_pk_bf16_f32 v16, v16, v17")
e("v_cvt_pk_bf16_f32 v18, v18, v19")
e("v_mov_b32 v17, v24")
e("v_mov_b32 v19, v25")
e("v_cndmask_b32 v16, v16, v12, vcc")
e("v_cndmask_b32 v18, v18, v13, vcc")
e(f"s_mov_b32 s{S_T2}, {COPY}")
e(f"buffer_store_dwordx4 v[16:19], v28, {WSR}, 0 offen")
e(f"s_cmp_eq_u32 s{S_CO}, 0")
e("s_cbranch_scc1 L_b_nos")
e(f"buffer_store_dwordx4 v[16:19], v28, {WSR}, s{S_T2} offen sc1")
lab("L_b_nos")
stamp(7)
lab("L_b_gather")
e(f"s_cmp_ge_u32 s{S_S}, 14")
e("s_cbranch_scc1 L_b_end")
e(f"s_and_b32 s{S_T0}, s{S_BW}, 3")
e(f"s_cmp_lg_u32 s{S_T0}, 0")
e("s_cbranch_scc1 L_b_end")
e(f"s_lshr_b32 s{S_T3}, s{S_BW}, 2")
e(f"s_cmp_eq_u32 s{S_T3}, 0")
e("s_cbranch_scc1 L_b_g0")
e(f"s_cmp_eq_u32 s{S_H}, {SPARE}")
e("s_cbranch_scc1 L_b_end")
lab("L_b_g0")
e(f"s_mul_i32 s{S_T0}, s{S_H}, 14")
e(f"s_add_u32 s{S_T0}, s{S_T0}, s{S_S}")
e(f"s_mul_i32 s{S_T0}, s{S_T0}, {OST}")
e(f"s_mul_i32 s{S_T1}, s{S_T3}, {B1B-A1B}")
e(f"s_add_u32 s{S_T0}, s{S_T0}, s{S_T1}")
e(f"s_add_u32 s{S_T0}, s{S_T0}, {A1B}")
e(f"v_lshl_add_u32 v20, v1, 4, s{S_T0}")
e(f"s_mul_i32 s{S_T0}, s{S_T3}, 28672")
e(f"s_lshl_b32 s{S_T1}, s{S_S}, 11")
e(f"s_add_u32 s{S_T0}, s{S_T0}, s{S_T1}")
e(f"s_lshl_b32 s{S_T1}, s{S_H}, 8")
e(f"s_add_u32 s{S_T0}, s{S_T0}, s{S_T1}")
e(f"s_add_u32 s{S_T0}, s{S_T0}, {F2B}")
e("v_and_b32 v21, 7, v1")
e("v_lshlrev_b32 v21, 5, v21")
e("v_bfe_u32 v22, v1, 3, 1")
e("v_lshl_add_u32 v21, v22, 4, v21")
e(f"v_add_u32 v21, s{S_T0}, v21")
GN = 32
ipoll("L_b_g", [(None, f"buffer_load_dwordx4 v[{GN+4*n}:{GN+4*n+3}], v20, {WSR}, s{S_CP} offen offset:{n*1024} sc1", GN + 4 * n + 1, GN + 4 * n + 3) for n in range(4)],
      sleep=FSLEEP, dual="flag")
for n in range(4):
    e(f"v_lshlrev_b32 v{GN+4*n+1}, 16, v{GN+4*n}")
    e(f"v_lshlrev_b32 v{GN+4*n+3}, 16, v{GN+4*n+2}")
    e(f"v_and_b32 v{GN+4*n}, 0xffff0000, v{GN+4*n}")
    e(f"v_and_b32 v{GN+4*n+2}, 0xffff0000, v{GN+4*n+2}")
src = [1, 0, 3, 2]
for j in range(4):
    e(f"v_add_f32 v{12+j}, v{GN+src[j]}, v{GN+4+src[j]}")
    e(f"v_add_f32 v{16+j}, v{GN+8+src[j]}, v{GN+12+src[j]}")
for j in range(4):
    e(f"v_add_f32 v{12+j}, v{12+j}, v{16+j}")
G4 = [12, 13, 14, 15]
e("v_cmp_eq_u32 vcc, 1, v22")
dpp_red("v_add_f32", G4, "row_ror:8")
swap_red("v_add_f32", G4, [16, 17, 18, 19], 16)
swap_red("v_add_f32", G4, [16, 17, 18, 19], 32)
e("v_cndmask_b32 v16, v12, v14, vcc")
e("v_mov_b32 v17, v24")
e("v_cndmask_b32 v18, v13, v15, vcc")
e("v_mov_b32 v19, v25")
e("s_mov_b32 exec_lo, 0xffff")
e("s_mov_b32 exec_hi, 0")
e(f"buffer_store_dwordx4 v[16:19], v21, {WSR}, 0 offen sc1")
lab("L_b_end")
stamp(8)
dump_stamps(9, 2, 3)
e("s_endpgm")

lab("L_ctrlA")
c("================= control A =================")
e("s_setprio 3")
srd(R0, sX, 896)
srd(R1, sWQ, 448 * 8192)
srd(R3, sWO, 4096 * 896)
srd(R4, sOUT, 896)
srd(R5, sB2, 896)
e(f"s_getreg_b32 s{S_XC}, hwreg(HW_REG_XCC_ID)")
e(f"s_and_b32 s{S_XC}, s{S_XC}, 7")
e("v_lshlrev_b32 v2, 4, v1")
e(f"buffer_load_dwordx4 v[4:7], v2, s[{R0}:{R0+3}], 0 offen")
e("v_lshrrev_b32 v3, 2, v1")
e("v_lshlrev_b32 v8, 14, v3")
e("v_and_b32 v9, 3, v1")
e("v_lshl_add_u32 v8, v9, 4, v8")
e(f"s_lshl_b32 s{S_T0}, s{S_H}, 10")
e(f"s_lshr_b32 s{S_T1}, s{S_S}, 1")
e(f"s_lshl_b32 s{S_T1}, s{S_T1}, 6")
e(f"s_add_u32 s{S_T0}, s{S_T0}, s{S_T1}")
e(f"s_and_b32 s{S_T1}, s{S_S}, 1")
e(f"s_mul_i32 s{S_T1}, s{S_T1}, {224*8192}")
e(f"s_add_u32 s{S_T0}, s{S_T0}, s{S_T1}")
e(f"v_add_u32 v8, s{S_T0}, v8")
WQ = 32
for p in range(7):
    for u in range(2):
        idx = 2 * p + u
        st = S_T2 + (idx & 1)
        e(f"s_mov_b32 s{st}, {p*32*8192 + u*8192}")
        e(f"buffer_load_dwordx4 v[{WQ+4*idx}:{WQ+4*idx+3}], v8, s[{R1}:{R1+3}], s{st} offen nt")
e("v_and_b32 v31, 3, v1")
e("v_lshlrev_b32 v31, 6, v31")
e("v_lshrrev_b32 v30, 5, v1")
e("v_lshl_add_u32 v31, v30, 5, v31")
e("v_bfe_u32 v30, v1, 4, 1")
e("v_lshl_add_u32 v31, v30, 4, v31")
e(f"s_lshl_b32 s{S_T0}, s{S_H}, 13")
e(f"s_and_b32 s{S_T1}, s{S_S}, 1")
e(f"s_lshl_b32 s{S_T1}, s{S_T1}, 12")
e(f"s_add_u32 s{S_T0}, s{S_T0}, s{S_T1}")
e(f"s_lshr_b32 s{S_T1}, s{S_S}, 1")
e(f"s_lshl_b32 s{S_T1}, s{S_T1}, 8")
e(f"s_add_u32 s{S_T0}, s{S_T0}, s{S_T1}")
e(f"s_add_u32 s{S_T0}, s{S_T0}, {QB}")
e(f"v_add_u32 v31, s{S_T0}, v31")
NX = 0
if PRER:
    NX = 0
e(f"s_lshl_b32 s{S_T0}, s{S_H}, 5")
e(f"s_add_u32 s{S_T0}, s{S_T0}, s{S_S}")
e(f"s_mul_i32 s{S_T0}, s{S_T0}, {OST}")
e(f"s_add_u32 s{S_T0}, s{S_T0}, {OB}")
e(f"v_add_u32 v29, s{S_T0}, v2")
if PRER:
    e(f"s_mul_i32 s{S_T0}, s2, 1808")
    e(f"s_add_u32 s{S_T0}, s{S_T0}, {FAB}")
    e(f"v_add_u32 v30, s{S_T0}, v2")
    e(f"buffer_load_dwordx4 v[24:27], v30, {WSR}, 0 offen sc1")
    e(f"buffer_load_dwordx4 v[24:27], v30, {WSR}, 0 offen offset:1024 sc1")
e("s_barrier")
if PRER:
    NX = 2
e("v_cmp_gt_u32 vcc, 56, v1")
e("s_nop 1")
e("v_cndmask_b32 v9, 0, 1.0, vcc")
e(f"s_waitcnt vmcnt({14+NX})")
stamp(1)
F = list(range(10, 18))
for k in range(4):
    e(f"v_lshlrev_b32 v{F[2*k]}, 16, v{4+k}")
    e(f"v_and_b32 v{F[2*k+1]}, 0xffff0000, v{4+k}")
layernorm(F, [18, 19, 20, 21], 9)
for k in range(4):
    e(f"v_cvt_pk_bf16_f32 v{4+k}, v{F[2*k]}, v{F[2*k+1]}")
e(f"ds_write_b128 v2, v[4:7] offset:{L_XA}")
e(f"s_and_b32 s{S_T1}, s{S_S}, 1")
e(f"s_mul_i32 s{S_T1}, s{S_T1}, 448")
e(f"v_lshl_add_u32 v3, v3, 2, s{S_T1}")
XP = 88
for p in range(7):
    e(f"ds_read_b32 v{XP+p}, v3 offset:{L_XA+64*p}")
e(f"s_mov_b32 s{S_T2}, 0x05040100")
e(f"s_mov_b32 s{S_T3}, 0x07060302")
AC = 96
for k in range(8):
    e(f"v_mov_b32 v{AC+k+8}, 0")
AC = 104
e("s_waitcnt lgkmcnt(0)")
tags()
if PREW:
    e("v_mov_b32 v24, 0")
    e(f"v_not_b32 v25, s{S_TA}")
    e("v_mov_b32 v26, 0")
    e(f"v_not_b32 v27, s{S_TB}")
    for n in range(4):
        e(f"buffer_store_dwordx4 v[24:27], v29, {WSR}, 0 offen offset:{n*1024}")
    e(f"s_cmp_ge_u32 s{S_S}, 14")
    e("s_cbranch_scc1 L_a_npw")
    e(f"s_mul_i32 s{S_T0}, s{S_H}, 14")
    e(f"s_add_u32 s{S_T0}, s{S_T0}, s{S_S}")
    e(f"s_mul_i32 s{S_T0}, s{S_T0}, {OST}")
    e(f"s_add_u32 s{S_T0}, s{S_T0}, {A1B}")
    e(f"v_add_u32 v28, s{S_T0}, v2")
    e(f"s_mov_b32 s{S_T0}, {B1B-A1B}")
    for n in range(4):
        e(f"buffer_store_dwordx4 v[24:27], v28, {WSR}, 0 offen offset:{n*1024}")
    for n in range(4):
        e(f"buffer_store_dwordx4 v[24:27], v28, {WSR}, s{S_T0} offen offset:{n*1024}")
    lab("L_a_npw")
stamp(2)
for p in range(7):
    e(f"s_waitcnt vmcnt({12-2*p+NX+(4 if PREW else 0)})")
    a, b = WQ + 8 * p, WQ + 8 * p + 4
    for k in range(4):
        e(f"v_perm_b32 v{112+2*k}, v{b+k}, v{a+k}, s{S_T2}")
        e(f"v_perm_b32 v{113+2*k}, v{b+k}, v{a+k}, s{S_T3}")
    for k in range(8):
        e(f"v_dot2_f32_bf16 v{AC+k}, v{112+k}, v{XP+p}, v{AC+k}")
    e("s_nop 2")
stamp(3)
e("s_nop 2")
for k in range(4):
    e(f"v_permlane32_swap_b32 v{AC+k}, v{AC+k+4}")
for k in range(4):
    e(f"v_add_f32 v{AC+k}, v{AC+k}, v{AC+k+4}")
e("s_nop 1")
for k in range(2):
    e(f"v_permlane16_swap_b32 v{AC+k}, v{AC+k+2}")
for k in range(2):
    e(f"v_add_f32 v{AC+k}, v{AC+k}, v{AC+k+2}")
e("s_nop 1")
dpp_red("v_add_f32", [AC, AC + 1], "row_ror:8")
dpp_red("v_add_f32", [AC, AC + 1], "row_ror:4")
e(f"v_mov_b32 v112, v{AC}")
e(f"v_mov_b32 v113, s{S_TA}")
e(f"v_mov_b32 v114, v{AC+1}")
e(f"s_xor_b32 s{S_XC}, s{S_XC}, s{S_TB}")
e(f"v_mov_b32 v115, s{S_XC}")
e("s_mov_b32 exec_lo, 0x000f000f")
e("s_mov_b32 exec_hi, 0x000f000f")
e("s_waitcnt vmcnt(0)")
e(f"s_mov_b32 s{S_T2}, {COPY}")
e(f"buffer_store_dwordx4 v[112:115], v31, {WSR}, 0 offen")
e(f"buffer_store_dwordx4 v[112:115], v31, {WSR}, s{S_T2} offen sc1")
e("s_mov_b64 exec, -1")
stamp(4)
e("v_mov_b32 v18, v29")
if not QEARLY:
    e("v_mov_b32 v22, 0")
    lds_spin("L_a_k", 22, L_FK, 20, sleep=2)
stamp(6)
e(f"s_lshl_b32 s{S_T0}, s{S_H}, 13")
e(f"s_add_u32 s{S_T0}, s{S_T0}, {QB}")
e(f"v_add_u32 v19, s{S_T0}, v2")
e("v_add_u32 v20, 4096, v19")
QG = 96
ipoll("L_a_q",
      [(None, f"buffer_load_dwordx4 v[{QG+4*n}:{QG+4*n+3}], v19, {WSR}, s{S_CP} offen offset:{n*1024} sc1", QG + 4 * n + 1, QG + 4 * n + 3) for n in range(4)] +
      [(None, f"buffer_load_dwordx4 v[{QG+16+4*n}:{QG+16+4*n+3}], v20, {WSR}, s{S_CP} offen offset:{n*1024} sc1", QG + 16 + 4 * n + 1, QG + 16 + 4 * n + 3) for n in range(4)],
      dual=True, xt=21)
for n in range(8):
    e(f"v_cmp_ne_u32 s[{MASKS[n]}:{MASKS[n]+1}], s{S_XC}, v{QG+4*n+3}")
for n in range(1, 8):
    e(f"s_or_b64 s[{MASKS[0]}:{MASKS[0]+1}], s[{MASKS[0]}:{MASKS[0]+1}], s[{MASKS[n]}:{MASKS[n]+1}]")
e(f"s_or_b32 s{S_CO}, s{MASKS[0]}, s{MASKS[0]+1}")
e(f"v_mov_b32 v23, s{S_CO}")
for n in range(4):
    e(f"v_add_f32 v{QG+4*n}, v{QG+4*n}, v{QG+16+4*n}")
    e(f"v_add_f32 v{QG+4*n+2}, v{QG+4*n+2}, v{QG+16+4*n+2}")
for n in range(4):
    e(f"v_cvt_pk_bf16_f32 v{QG+4*n}, v{QG+4*n}, v{QG+4*n+2}")
e("v_lshlrev_b32 v19, 2, v1")
e(f"v_mov_b32 v20, s{S_TA}")
e(f"v_mov_b32 v21, s{S_TB}")
e("v_mov_b32 v22, 0")
for n in range(4):
    e(f"ds_write_b32 v19, v{QG+4*n} offset:{L_Q+256*n}")
e(f"ds_write_b32 v22, v23 offset:{L_CO}")
e(f"ds_write_b64 v22, v[20:21] offset:{L_FQ}")
stamp(5)
if PRE2:
    e(f"s_cmp_lg_u32 s{S_H}, 0")
    e("s_cbranch_scc1 L_a_np2")
    e(f"s_cmp_ge_u32 s{S_S}, 14")
    e("s_cbranch_scc1 L_a_np2")
    e(f"s_lshl_b32 s{S_T0}, s{S_S}, 11")
    e(f"s_add_u32 s{S_T0}, s{S_T0}, {F2B}")
    e(f"v_add_u32 v19, s{S_T0}, v2")
    e(f"s_movk_i32 s{S_T0}, 28672")
    e(f"buffer_load_dwordx4 v[96:99], v19, {WSR}, 0 offen sc1")
    e(f"buffer_load_dwordx4 v[96:99], v19, {WSR}, 0 offen offset:1024 sc1")
    e(f"buffer_load_dwordx4 v[96:99], v19, {WSR}, s{S_T0} offen sc1")
    e(f"buffer_load_dwordx4 v[96:99], v19, {WSR}, s{S_T0} offen offset:1024 sc1")
    lab("L_a_np2")
e("v_and_b32 v23, 15, v1")
e("v_lshrrev_b32 v24, 4, v1")
e(f"s_movk_i32 s{S_T2}, 896")
e(f"v_mul_lo_u32 v25, v24, s{S_T2}")
e("v_lshl_add_u32 v25, v23, 4, v25")
e(f"s_lshl_b32 s{S_T0}, s{S_H}, 5")
e(f"s_add_u32 s{S_T0}, s{S_T0}, s{S_S}")
e(f"s_mul_i32 s{S_T0}, s{S_T0}, {16*896}")
e(f"v_add_u32 v25, s{S_T0}, v25")
WO = 32
if LATEW:
    lds_spin("L_a_i", 22, L_FI, 20, sleep=2)
for t in range(4):
    st = S_T2 + (t & 1)
    e(f"s_mov_b32 s{st}, {t*4*896}")
    for blk in range(4):
        idx = 4 * t + blk
        e(f"buffer_load_dwordx4 v[{WO+4*idx}:{WO+4*idx+3}], v25, s[{R3}:{R3+3}], s{st} offen offset:{blk*256} nt")
e(f"s_lshl_b32 s{S_T0}, s{S_S}, 6")
e("v_and_b32 v26, 15, v1")
e(f"v_lshl_add_u32 v26, v26, 2, s{S_T0}")
e(f"buffer_load_dword v27, v26, s[{R0}:{R0+3}], 0 offen")
e(f"buffer_load_dword v28, v26, s[{R5}:{R5+3}], 0 offen")
vM = [10, 11, 12, 13]
sel_masks(vM, 1, 14, 15, True)
e("v_lshrrev_b32 v30, 1, v24")
e("v_cmp_eq_u32 vcc, 1, v30")
for t in range(4):
    e(f"v_mov_b32 v{14+t}, {4*t}")
    e(f"v_mov_b32 v31, {4*(7-t)}")
    e(f"v_cndmask_b32 v{14+t}, v{14+t}, v31, vcc")
e("v_and_b32 v29, 1, v24")
e("v_cmp_eq_u32 vcc, 1, v29")
e("v_mov_b32 v29, 0x01000100")
e("v_mov_b32 v31, 0x03020302")
e("v_cndmask_b32 v29, v29, v31, vcc")
pub_addr(A1B, 30, 31, f"s{S_H}", f"s{S_S}")
e("v_and_b32 v20, 7, v1")
e("v_lshlrev_b32 v20, 3, v20")
e("s_waitcnt vmcnt(0)")
lds_spin("L_a_w", 20, L_FW, 22, sleep=2)
VN = 96
ipoll("L_a_o",
      [(None, f"buffer_load_dwordx4 v[{VN+4*n}:{VN+4*n+3}], v18, {WSR}, s{S_CP} offen offset:{n*1024} sc1", VN + 4 * n + 1, VN + 4 * n + 3) for n in range(4)],
      sleep=S2SLEEP, dual="flag")
stamp(7)
for n in range(4):
    e(f"v_mov_b32 v{VN+4*n+1}, v{VN+4*n}")
    e(f"v_mov_b32 v{VN+4*n+3}, v{VN+4*n+2}")
for n in range(4):
    e(f"v_mov_b32_dpp v{VN+4*n+1}, v{VN+4*n} row_half_mirror row_mask:0xf bank_mask:0x5")
    e(f"v_mov_b32_dpp v{VN+4*n+3}, v{VN+4*n+2} row_half_mirror row_mask:0xf bank_mask:0x5")
e(f"v_max3_f32 v20, v{VN+1}, v{VN+5}, v{VN+9}")
e(f"v_max_f32 v20, v{VN+13}, v20")
for n in range(4):
    e(f"v_lshlrev_b32 v{112+4*n}, 16, v{VN+4*n}")
    e(f"v_and_b32 v{113+4*n}, 0xffff0000, v{VN+4*n}")
    e(f"v_lshlrev_b32 v{114+4*n}, 16, v{VN+4*n+2}")
    e(f"v_and_b32 v{115+4*n}, 0xffff0000, v{VN+4*n+2}")
dpp_red("v_max_f32", [20], "row_ror:8")
swap_red("v_max_f32", [20], [21], 16)
swap_red("v_max_f32", [20], [21], 32)
for n in range(4):
    e(f"v_sub_f32 v{VN+4*n+1}, v{VN+4*n+1}, v20")
for n in range(4):
    e(f"v_mul_f32 v{VN+4*n+1}, s{S_C}, v{VN+4*n+1}")
for n in range(4):
    e(f"v_exp_f32 v{VN+4*n+1}, v{VN+4*n+1}")
e("s_nop 0")
e(f"v_mul_f32 v20, v{VN+1}, v{VN+3}")
for j in range(4):
    e(f"v_mul_f32 v{21+j}, v{VN+1}, v{112+j}")
for n in range(1, 4):
    e(f"v_fmac_f32 v20, v{VN+4*n+1}, v{VN+4*n+3}")
    for j in range(4):
        e(f"v_fmac_f32 v{21+j}, v{VN+4*n+1}, v{112+4*n+j}")
R5v = [20, 21, 22, 23, 24]
dpp_red("v_add_f32", R5v, "row_ror:8")
swap_red("v_add_f32", R5v, [112, 113, 114, 115, 116], 16)
swap_red("v_add_f32", R5v, [112, 113, 114, 115, 116], 32)
e("v_rcp_f32 v20, v20")
e("s_nop 0")
for j in range(4):
    e(f"v_mul_f32 v{21+j}, v{21+j}, v20")
e("v_cvt_pk_bf16_f32 v21, v21, v22")
e("v_cvt_pk_bf16_f32 v23, v23, v24")
e("s_nop 1")
e("v_mov_b32_dpp v21, v23 row_half_mirror row_mask:0xf bank_mask:0xa")
e("s_nop 0")
for t in range(4):
    e(f"ds_bpermute_b32 v{VN+t}, v{14+t}, v21")
e("s_waitcnt lgkmcnt(0)")
for t in range(4):
    e(f"v_perm_b32 v{VN+t}, v{VN+t}, v{VN+t}, v29")
AR2 = 100
for t in range(4):
    for r in range(4):
        e(f"v_and_b32 v{AR2+4*t+r}, v{VN+t}, v{vM[r]}")
e("s_nop 1")
DAr = [116, 120, 124, 4]
for t in range(4):
    for blk in range(4):
        idx = 4 * t + blk
        dd = DAr[blk]
        cc = "0" if t == 0 else f"v[{dd}:{dd+3}]"
        e(f"v_mfma_f32_16x16x32_bf16 v[{dd}:{dd+3}], v[{AR2+4*t}:{AR2+4*t+3}], v[{WO+4*idx}:{WO+4*idx+3}], {cc}")
e("s_nop 7")
publish_D(DAr, 30, 96, "L_a_nos")
stamp(8)
e(f"s_cmp_lg_u32 s{S_H}, 0")
e("s_cbranch_scc1 L_a_end")
e(f"s_cmp_ge_u32 s{S_S}, 14")
e("s_cbranch_scc1 L_a_end")
e(f"s_lshl_b32 s{S_T0}, s{S_S}, 11")
e(f"s_add_u32 s{S_T0}, s{S_T0}, {F2B}")
e(f"v_add_u32 v18, s{S_T0}, v2")
e("v_add_u32 v19, 28672, v18")
IGN = 0xffff << (16 * (SPARE - 4)) if SPARE >= 4 else 0xffff << (16 * SPARE)
ipoll("L_a_f",
      [(None, f"buffer_load_dwordx4 v[32:35], v18, {WSR}, 0 offen sc1", 33, 35),
       (None, f"buffer_load_dwordx4 v[36:39], v18, {WSR}, 0 offen offset:1024 sc1", 37, 39),
       (None, f"buffer_load_dwordx4 v[40:43], v19, {WSR}, 0 offen sc1", 41, 43),
       (None, f"buffer_load_dwordx4 v[44:47], v19, {WSR}, 0 offen offset:1024 sc1", 45, 47)],
      sleep=FSLEEP, ign={(3 if SPARE >= 4 else 2): IGN})
stamp(9)
e(f"s_mov_b32 exec_lo, 0x{IGN & 0xffffffff:x}")
e(f"s_mov_b32 exec_hi, 0x{IGN >> 32:x}")
zr = 44 if SPARE >= 4 else 40
e(f"v_mov_b32 v{zr}, 0")
e(f"v_mov_b32 v{zr+2}, 0")
e("s_mov_b64 exec, -1")
e("v_add_f32 v20, v32, v36")
e("v_add_f32 v21, v34, v38")
e("v_add_f32 v18, v40, v44")
e("v_add_f32 v19, v42, v46")
e("v_lshlrev_b32 v22, 16, v27")
e("v_and_b32 v23, 0xffff0000, v27")
e("v_lshlrev_b32 v24, 16, v28")
e("v_and_b32 v25, 0xffff0000, v28")
F4 = [20, 21, 18, 19]
swap_red("v_add_f32", F4, [32, 33, 34, 35], 16)
swap_red("v_add_f32", F4, [32, 33, 34, 35], 32)
for j in range(2):
    bf16r(20 + j, 20 + j)
    bf16r(18 + j, 18 + j)
for j in range(2):
    e(f"v_add_f32 v{20+j}, v{20+j}, v{22+j}")
    e(f"v_add_f32 v{18+j}, v{18+j}, v{24+j}")
for j in range(2):
    bf16r(20 + j, 20 + j)
    bf16r(18 + j, 18 + j)
for j in range(2):
    e(f"v_add_f32 v{20+j}, v{20+j}, v{18+j}")
e("v_cvt_pk_bf16_f32 v20, v20, v21")
e("s_mov_b32 exec_lo, 0xffff")
e("s_mov_b32 exec_hi, 0")
e(f"buffer_store_dword v20, v26, s[{R4}:{R4+3}], 0 offen")
e("s_cmp_lg_u32 s2, 0")
e("s_cbranch_scc1 L_a_end")
e("s_mov_b32 exec_lo, 1")
e(f"v_mov_b32 v21, s{S_TA}")
e("v_mov_b32 v22, 0")
e(f"buffer_store_dword v21, v22, {WSR}, 0 offen sc1")
lab("L_a_end")
stamp(10)
dump_stamps(11, 2, 3)
e("s_endpgm")

W2L = 'W2 = 32\ne(f"s_movk_i32 s{S_T3}, 3584")\nfor t in range(2):\n    for blk in range(4):\n        idx = 4 * t + blk\n        so = "0" if t == 0 else f"s{S_T3}"\n        e(f"buffer_load_dwordx4 v[{W2+4*idx}:{W2+4*idx+3}], v25, s[{R3}:{R3+3}], {so} offen offset:{blk*256} nt")\n'
lab("L_ctrlB")
c("================= control B =================")
S_J = 43
if SPARE < 0:
    e("s_cmp_ge_u32 s2, 224")
    e("s_cbranch_scc1 L_end")
    e(f"s_mov_b32 s{S_J}, s2")
else:
    e(f"s_cmp_eq_u32 s{S_H}, {SPARE}")
    e("s_cbranch_scc1 L_end")
    e(f"s_cmp_gt_u32 s{S_H}, {SPARE}")
    e(f"s_cselect_b32 s{S_T0}, 1, 0")
    e(f"s_sub_u32 s{S_T0}, s{S_H}, s{S_T0}")
    e(f"s_lshl_b32 s{S_J}, s{S_T0}, 5")
    e(f"s_add_u32 s{S_J}, s{S_J}, s{S_S}")
    e(f"s_mov_b32 s{S_XC}, s{S_H}")
    e(f"s_mov_b32 s{S_CPC+2}, s{S_S}")
    e(f"s_and_b32 s{S_H}, s{S_J}, 7")
    e(f"s_lshr_b32 s{S_S}, s{S_J}, 3")
e("s_setprio 2")
srd(R0, sX, 896)
srd(R1, sW1, 448 * 3584)
srd(R3, sW2, 1792 * 896)
srd(R4, sB1, 3584)
e("v_lshlrev_b32 v2, 4, v1")
e(f"buffer_load_dwordx4 v[4:7], v2, s[{R0}:{R0+3}], 0 offen")
e("v_lshrrev_b32 v3, 3, v1")
e(f"s_movk_i32 s{S_T2}, 3584")
e(f"v_mul_lo_u32 v8, v3, s{S_T2}")
e("v_and_b32 v9, 7, v1")
e("v_lshl_add_u32 v8, v9, 4, v8")
e(f"s_mul_i32 s{S_T0}, s{S_H}, {56*3584}")
e(f"s_lshl_b32 s{S_T1}, s{S_S}, 7")
e(f"s_add_u32 s{S_T0}, s{S_T0}, s{S_T1}")
e(f"v_add_u32 v8, s{S_T0}, v8")
W1 = 32
NXB = 0
for t in range(7):
    st = S_T2 + (t & 1)
    e(f"s_mov_b32 s{st}, {t*8*3584}")
    e(f"buffer_load_dwordx4 v[{W1+4*t}:{W1+4*t+3}], v8, s[{R1}:{R1+3}], s{st} offen nt")
e("v_and_b32 v31, 7, v1")
e("v_lshlrev_b32 v31, 6, v31")
e("v_lshrrev_b32 v30, 5, v1")
e("v_lshl_add_u32 v31, v30, 5, v31")
e("v_bfe_u32 v30, v1, 4, 1")
e("v_lshl_add_u32 v31, v30, 4, v31")
e(f"s_lshl_b32 s{S_T0}, s{S_J}, 9")
e(f"s_add_u32 s{S_T0}, s{S_T0}, {HB}")
e(f"v_add_u32 v31, s{S_T0}, v31")
e("s_barrier")
e("v_cmp_gt_u32 vcc, 56, v1")
e("s_nop 1")
e("v_cndmask_b32 v9, 0, 1.0, vcc")
e(f"s_waitcnt vmcnt({7+NXB})")
stamp(1)
F = list(range(10, 18))
for k in range(4):
    e(f"v_lshlrev_b32 v{F[2*k]}, 16, v{4+k}")
    e(f"v_and_b32 v{F[2*k+1]}, 0xffff0000, v{4+k}")
layernorm(F, [18, 19, 20, 21], 9)
layernorm(F, [18, 19, 20, 21], 9)
e("v_lshlrev_b32 v18, 5, v1")
e(f"ds_write_b128 v18, v[10:13] offset:{L_YB}")
e(f"ds_write_b128 v18, v[14:17] offset:{L_YB+16}")
e(f"s_mul_i32 s{S_T0}, s{S_H}, {56*4}")
e(f"v_lshl_add_u32 v18, v3, 2, s{S_T0}")
YP = 88
for t in range(7):
    e(f"ds_read_b32 v{YP+t}, v18 offset:{L_YB+32*t}")
AC = 104
for k in range(8):
    e(f"v_mov_b32 v{AC+k}, 0")
e("s_waitcnt lgkmcnt(0)")
tags()
for t in range(7):
    e(f"s_waitcnt vmcnt({6-t+NXB})")
    for k in range(4):
        e(f"v_lshlrev_b32 v{112+2*k}, 16, v{W1+4*t+k}")
        e(f"v_and_b32 v{113+2*k}, 0xffff0000, v{W1+4*t+k}")
    for k in range(8):
        e(f"v_fmac_f32 v{AC+k}, v{112+k}, v{YP+t}")
e("s_nop 1")
for k in range(4):
    e(f"v_permlane32_swap_b32 v{AC+k}, v{AC+k+4}")
for k in range(4):
    e(f"v_add_f32 v{AC+k}, v{AC+k}, v{AC+k+4}")
e("s_nop 1")
for k in range(2):
    e(f"v_permlane16_swap_b32 v{AC+k}, v{AC+k+2}")
for k in range(2):
    e(f"v_add_f32 v{AC+k}, v{AC+k}, v{AC+k+2}")
e("s_nop 1")
dpp_red("v_add_f32", [AC, AC + 1], "row_ror:8")
e(f"v_mov_b32 v112, v{AC}")
e(f"v_mov_b32 v113, s{S_TA}")
e(f"v_mov_b32 v114, v{AC+1}")
e(f"v_mov_b32 v115, s{S_TB}")
e("s_mov_b32 exec_lo, 0x00ff00ff")
e("s_mov_b32 exec_hi, 0x00ff00ff")
e(f"s_mov_b32 s{S_T2}, {COPY}")
e(f"buffer_store_dwordx4 v[112:115], v31, {WSR}, 0 offen")
e(f"buffer_store_dwordx4 v[112:115], v31, {WSR}, s{S_T2} offen sc1")
e("s_mov_b64 exec, -1")
stamp(2)
e("v_and_b32 v23, 15, v1")
e("v_lshrrev_b32 v24, 4, v1")
e(f"s_movk_i32 s{S_T2}, 896")
e(f"v_mul_lo_u32 v25, v24, s{S_T2}")
e("v_lshl_add_u32 v25, v23, 4, v25")
e(f"s_mul_i32 s{S_T0}, s{S_J}, {8*896}")
e(f"v_add_u32 v25, s{S_T0}, v25")
W2 = 32
if not LATEW:
    exec(W2L)
e("v_bfe_u32 v26, v1, 3, 2")
e("v_lshlrev_b32 v26, 2, v26")
e(f"s_lshl_b32 s{S_T0}, s{S_J}, 4")
e(f"v_add_u32 v26, s{S_T0}, v26")
e(f"buffer_load_dword v27, v26, s[{R4}:{R4+3}], 0 offen")
vM = [10, 11, 12, 13]
sel_masks(vM, 1, 14, 15, True)
e("v_lshrrev_b32 v14, 1, v24")
e("v_lshlrev_b32 v14, 5, v14")
e("v_add_u32 v15, 64, v14")
e("v_and_b32 v29, 1, v24")
e("v_cmp_eq_u32 vcc, 1, v29")
e("v_mov_b32 v29, 0x01000100")
e("v_mov_b32 v28, 0x03020302")
e("v_cndmask_b32 v29, v29, v28, vcc")
pub_addr(B1B, 30, 31, f"s{S_XC}", f"s{S_CPC+2}")
e("v_and_b32 v18, 7, v1")
e("v_lshlrev_b32 v18, 9, v18")
e("v_bfe_u32 v19, v1, 3, 2")
e("v_lshl_add_u32 v18, v19, 4, v18")
e(f"s_lshl_b32 s{S_T0}, s{S_S}, 12")
e(f"s_lshl_b32 s{S_T1}, s{S_H}, 6")
e(f"s_add_u32 s{S_T0}, s{S_T0}, s{S_T1}")
e(f"s_add_u32 s{S_T0}, s{S_T0}, {HB}")
e(f"v_add_u32 v18, s{S_T0}, v18")
e("v_mov_b32 v22, 0")
lds_spin("L_m_k", 22, L_FK, 20, sleep=4)
ipoll("L_m_h", [(None, f"buffer_load_dwordx4 v[96:99], v18, {WSR}, s{S_CP} offen sc1", 97, 99)], dual=True)
stamp(3)
if LATEW:
    e("v_mov_b32 v22, 0")
    lds_spin("L_m_i", 22, L_FI, 20, sleep=4)
    exec(W2L)
e("v_mov_b32 v20, v96")
e("v_mov_b32 v21, v98")
e("s_nop 1")
dpp_red("v_add_f32", [20, 21], "quad_perm:[1,0,3,2]")
dpp_red("v_add_f32", [20, 21], "quad_perm:[2,3,0,1]")
dpp_red("v_add_f32", [20, 21], "row_half_mirror")
bf16r(20, 20)
bf16r(21, 21)
e("v_lshlrev_b32 v22, 16, v27")
e("v_and_b32 v23, 0xffff0000, v27")
e("v_add_f32 v20, v20, v22")
e("v_add_f32 v21, v21, v23")
bf16r(20, 20)
bf16r(21, 21)
K0 = 0.7978845608028654
K1 = 0.044715
e(f"s_mov_b32 s{S_T0}, 0x{f32hex(K1)}")
e(f"s_mov_b32 s{S_T1}, 0x{f32hex(-2.0*K0*LOG2E)}")
for (x, t) in ((20, 22), (21, 23)):
    e(f"v_mul_f32 v{t}, v{x}, v{x}")
    e(f"v_mul_f32 v{t}, v{t}, v{x}")
    e(f"v_fma_f32 v{t}, v{t}, s{S_T0}, v{x}")
    e(f"v_mul_f32 v{t}, s{S_T1}, v{t}")
    e(f"v_exp_f32 v{t}, v{t}")
    e("s_nop 0")
    e(f"v_add_f32 v{t}, 1.0, v{t}")
    e(f"v_rcp_f32 v{t}, v{t}")
    e("s_nop 0")
    e(f"v_mul_f32 v{x}, v{x}, v{t}")
e("v_cvt_pk_bf16_f32 v21, v20, v21")
e("s_nop 0")
e("ds_bpermute_b32 v96, v14, v21")
e("ds_bpermute_b32 v97, v15, v21")
e("s_waitcnt lgkmcnt(0)")
e("v_perm_b32 v96, v96, v96, v29")
e("v_perm_b32 v97, v97, v97, v29")
AR3 = 100
for t in range(2):
    for r in range(4):
        e(f"v_and_b32 v{AR3+4*t+r}, v{96+t}, v{vM[r]}")
e("s_waitcnt vmcnt(0)")
DBr = [112, 116, 120, 124]
for t in range(2):
    for blk in range(4):
        idx = 4 * t + blk
        dd = DBr[blk]
        cc = "0" if t == 0 else f"v[{dd}:{dd+3}]"
        e(f"v_mfma_f32_16x16x32_bf16 v[{dd}:{dd+3}], v[{AR3+4*t}:{AR3+4*t+3}], v[{W2+4*idx}:{W2+4*idx+3}], {cc}")
e("s_nop 7")
e("v_mov_b32 v22, 0")
lds_spin("L_m_q", 22, L_FQ, 20, sleep=2)
e(f"ds_read_b32 v20, v22 offset:{L_CO}")
e("s_waitcnt lgkmcnt(0)")
e(f"v_readfirstlane_b32 s{S_CO}, v20")
publish_D(DBr, 30, 96, "L_m_nos")
stamp(4)
dump_stamps(5, 2, 3)
lab("L_end")
e("s_endpgm")

out.append('.section .rodata,"a"')
out.append(".p2align 6")
out.append(f".amdhsa_kernel {NAME}_kernel")
out.append("  .amdhsa_next_free_vgpr 128")
out.append("  .amdhsa_next_free_sgpr 102")
out.append("  .amdhsa_accum_offset 128")
out.append("  .amdhsa_group_segment_fixed_size 0")
out.append("  .amdhsa_kernarg_size 104")
out.append("  .amdhsa_user_sgpr_count 2")
out.append("  .amdhsa_user_sgpr_kernarg_segment_ptr 1")
out.append("  .amdhsa_system_sgpr_workgroup_id_x 1")
out.append("  .amdhsa_float_denorm_mode_32 3")
out.append("  .amdhsa_float_denorm_mode_16_64 3")
out.append(".end_amdhsa_kernel")
open(OUTFILE, "w").write("\n".join(out) + "\n")
print("wrote", OUTFILE, len(out), "lines")
```
